```python
import torch

def _softmax(x, axis=-1):
    return torch.softmax(x, dim=axis)
def _gelu(x):
    return torch.nn.functional.gelu(x, approximate="tanh")
def _silu(x):
    return torch.nn.functional.silu(x)
def _sigmoid(x):
    return torch.sigmoid(x)
def _layernorm(x, axis=-1, eps=1e-5):
    m = x.mean(dim=axis, keepdim=True)
    v = x.var(dim=axis, keepdim=True, unbiased=False)
    return (x - m) / torch.sqrt(v + eps)
def _scatter_add(tgt, idx, src, axis=0):
    return tgt.clone().index_add_(axis, idx, src)
def _segment_sum(src, seg, n):
    out = torch.zeros((n,) + src.shape[1:], dtype=src.dtype)
    return out.index_add_(0, seg, src)
def _pad(x, pw):
    flat = tuple(v for pair in reversed(pw) for v in pair)
    return torch.nn.functional.pad(x, flat)

kernel_name = 'parallel_sum__spectral_gfnet__glu_gated_bilinear__prompt'

def setup_inputs():

    _w = (lambda a: (lambda t: t.to(torch.bfloat16) if t.is_floating_point() else t)(torch.as_tensor(a)))
    def _A_setup():
        B, S, D = 1, 2048, 576
        Df = D // 2 + 1
        return {
            "x": _w((lambda *s: torch.randn(*s, dtype=torch.bfloat16) * 0.05)(B, S, D)),
            "w_r": _w((lambda *s: torch.randn(*s, dtype=torch.bfloat16) * 0.4)(S, Df) * 0.02),
            "w_i": _w((lambda *s: torch.randn(*s, dtype=torch.bfloat16) * 0.4)(S, Df) * 0.02),
        }
    _A_in = _A_setup()

    def _B_setup():
        B, S, D, F = 1, 2048, 576, 4608
        return {
            "x": _w((lambda *s: torch.randn(*s, dtype=torch.bfloat16) * 0.05)(B, S, D)),
            "w_gate": _w((lambda *s: torch.randn(*s, dtype=torch.bfloat16) * 0.2)(D, F) * (D ** -0.5)),
            "w_up": _w((lambda *s: torch.randn(*s, dtype=torch.bfloat16) * 0.2)(D, F) * (D ** -0.5)),
            "w_down": _w((lambda *s: torch.randn(*s, dtype=torch.bfloat16) * 0.2)(F, D) * (F ** -0.5)),
        }
    _B_in = _B_setup()

    return {
        "A_x": _A_in["x"],
        "A_w_r": _A_in["w_r"],
        "A_w_i": _A_in["w_i"],
        "B_x": _B_in["x"],
        "B_w_gate": _B_in["w_gate"],
        "B_w_up": _B_in["w_up"],
        "B_w_down": _B_in["w_down"],
    }

def reference(A_x, A_w_r, A_w_i, B_x, B_w_gate, B_w_up, B_w_down):
    def _A_ref(x, w_r, w_i):
        B, S, D = x.shape
        X = (lambda x, axes=(-2,-1): torch.fft.rfft2(x.float(), dim=axes))(x, axes=(-2, -1))
        W = w_r + 1j * w_i
        X = X * W
        y = (lambda x, s, axes=(-2,-1): torch.fft.irfft2(x, s=s, dim=axes).to(torch.bfloat16))(X, (S, D), axes=(-2, -1))
        return y

    def _B_ref(x, w_gate, w_up, w_down):
        g = torch.einsum("bsd,df->bsf", x, w_gate)
        u = torch.einsum("bsd,df->bsf", x, w_up)
        h = g * u
        return torch.einsum("bsf,fd->bsd", h, w_down)

    x = A_x
    xn = _layernorm(x, axis=-1)
    return x + _A_ref(xn, A_w_r, A_w_i) + _B_ref(xn, B_w_gate, B_w_up, B_w_down)
```

```python
import re

TRANS = ('v_exp_f32', 'v_log_f32', 'v_rcp_f32', 'v_rsq_f32', 'v_sqrt_f32', 'v_sin_f32', 'v_cos_f32', 'v_rcp_iflag_f32')

def regs_of(tok):
    t = tok.strip()
    t = t.lstrip('-')
    if t.startswith('abs(') and t.endswith(')'): t = t[4:-1]
    if t.startswith('|') and t.endswith('|'): t = t[1:-1]
    m = re.fullmatch(r'([vsa])(\d+)', t)
    if m: return [m.group(1) + m.group(2)]
    m = re.fullmatch(r'([vsa])\[(\d+):(\d+)\]', t)
    if m: return [m.group(1) + str(i) for i in range(int(m.group(2)), int(m.group(3)) + 1)]
    if t in ('vcc', 'vcc_lo', 'vcc_hi'): return ['vcc']
    if t in ('exec', 'exec_lo', 'exec_hi'): return ['exec']
    if t == 'm0': return ['m0']
    if t == 'scc': return ['scc']
    return []

class Ins:
    __slots__ = ('text', 'mn', 'ops', 'mods', 'rd', 'wr', 'cls', 'label', 'target', 'srcA', 'srcB', 'srcC', 'passes', 'states')
    def __init__(self, text):
        self.text = text
        self.label = None; self.target = None
        self.rd = set(); self.wr = set(); self.cls = 'other'
        self.srcA = self.srcB = self.srcC = ()
        self.passes = 0; self.states = 1
        s = text.split(';')[0].strip()
        if s.endswith(':'):
            self.label = s[:-1]; self.cls = 'label'; self.states = 0; self.mn = ''; self.ops = []; self.mods = ''; return
        if not s or s.startswith('.'):
            self.cls = 'dir'; self.states = 0; self.mn = ''; self.ops = []; self.mods = ''; return
        parts = s.split(None, 1)
        self.mn = mn = parts[0]
        rest = parts[1] if len(parts) > 1 else ''
        ops = []; cur = ''; depth = 0
        for ch in rest:
            if ch in '[(': depth += 1
            if ch in '])': depth -= 1
            if ch == ',' and depth == 0: ops.append(cur.strip()); cur = ''
            else: cur += ch
        if cur.strip(): ops.append(cur.strip())
        mods = ''
        if ops:
            last = ops[-1].split()
            if len(last) > 1:
                ops[-1] = last[0]; mods = ' '.join(last[1:])
        self.ops = ops; self.mods = mods
        R = lambda i: regs_of(ops[i]) if i < len(ops) else []
        if mn.startswith('v_mfma'):
            self.cls = 'mfma'
            self.wr = set(R(0)); self.srcA = R(1); self.srcB = R(2); self.srcC = R(3)
            self.rd = set(self.srcA) | set(self.srcB) | set(self.srcC)
            self.passes = 8 if '32x32' in mn else 4
        elif mn.startswith('v_'):
            self.cls = 'valu'
            base = mn.replace('_e32', '').replace('_e64', '').replace('_dpp', '').replace('_sdwa', '')
            if base.startswith('v_cmp'):
                self.wr = set(R(0)); self.rd = set(R(1) + R(2))
                if base.startswith('v_cmpx'): self.wr.add('exec')
            elif base in ('v_add_co_u32', 'v_sub_co_u32', 'v_subrev_co_u32'):
                self.wr = set(R(0) + R(1)); self.rd = set(R(2) + R(3))
            elif base in ('v_addc_co_u32', 'v_subb_co_u32'):
                self.wr = set(R(0) + R(1)); self.rd = set(R(2) + R(3) + R(4))
            elif base.startswith('v_permlane') and 'swap' in base:
                self.wr = set(R(0) + R(1)); self.rd = set(R(0) + R(1))
            elif base == 'v_nop':
                pass
            else:
                self.wr = set(R(0))
                for i in range(1, len(ops)): self.rd |= set(R(i))
                if base.startswith(('v_fmac', 'v_dot2c', 'v_mac', 'v_pk_fmac', 'v_writelane')): self.rd |= set(R(0))
                if base == 'v_cndmask_b32' and len(ops) == 3: self.rd.add('vcc')
                if '_dpp' in mn or '_sdwa' in mn: self.rd |= set(R(0)) if ('dpp' in mn) else set()
            if base in TRANS: self.cls = 'trans'
        elif mn.startswith('ds_'):
            self.cls = 'ds'
            if mn.startswith(('ds_read', 'ds_bpermute', 'ds_permute', 'ds_swizzle')):
                self.wr = set(R(0))
                for i in range(1, len(ops)): self.rd |= set(R(i))
            else:
                for i in range(len(ops)): self.rd |= set(R(i))
        elif mn.startswith(('buffer_', 'global_')):
            self.cls = 'vmem'
            lds = ' lds' in (' ' + mods) or '_lds_' in mn
            if mn in ('buffer_wbl2', 'buffer_inv'):
                pass
            elif lds:
                for i in range(len(ops)): self.rd |= set(R(i))
                self.rd.add('m0'); self.cls = 'vmem_lds'
            elif 'load' in mn:
                self.wr = set(R(0))
                for i in range(1, len(ops)): self.rd |= set(R(i))
                if 'd16' in mn: self.rd |= set(R(0))
            elif 'atomic' in mn:
                for i in range(len(ops)): self.rd |= set(R(i))
                if 'sc0' in mods: self.wr = set(R(0))
            else:
                for i in range(len(ops)): self.rd |= set(R(i))
                self.cls = 'vmem_store'
        elif mn.startswith('s_'):
            self.cls = 'salu'
            if mn == 's_nop':
                self.states = int(ops[0], 0) + 1; self.cls = 'nop'
            elif mn.startswith('s_cbranch') or mn == 's_branch':
                self.target = ops[0]; self.cls = 'branch'
            elif mn.startswith('s_load') or mn.startswith('s_buffer_load') or mn in ('s_memtime', 's_memrealtime'):
                self.cls = 'smem'; self.wr = set(R(0))
                for i in range(1, len(ops)): self.rd |= set(R(i))
            elif mn.startswith('s_cmp') or mn in ('s_waitcnt', 's_barrier', 's_endpgm', 's_setprio', 's_sleep'):
                for i in range(len(ops)): self.rd |= set(R(i))
            else:
                self.wr = set(R(0))
                for i in range(1, len(ops)): self.rd |= set(R(i))
                if 'saveexec' in mn: self.wr.add('exec'); self.rd.add('exec')
        else:
            raise ValueError('unparsed: ' + text)

def is_valu(i): return i.cls in ('valu', 'trans')
def data_regs(i):
    return set(regs_of(i.ops[0])) if i.cls == 'vmem_store' and i.mn.startswith('buffer') else (set(regs_of(i.ops[1])) if i.cls == 'vmem_store' else set())

def need(p, c):
    n = 0
    vw = lambda s: {r for r in s if r[0] in 'va' and r != 'vcc'}
    sw = lambda s: {r for r in s if (r[0] == 's' and r != 'scc') or r == 'vcc'}
    if is_valu(p):
        w = vw(p.wr)
        if c.cls == 'mfma' and w & c.rd: n = max(n, 2)
        if is_valu(c):
            if ('dpp' in c.mn or 'permlane' in c.mn) and w & c.rd: n = max(n, 2)
            if c.mn.startswith(('v_readfirstlane', 'v_readlane')) and w & c.rd: n = max(n, 1)
            if p.cls == 'trans' and w & c.rd and c.cls != 'trans': n = max(n, 1)
            if p.cls == 'trans' and w & c.rd and c.cls == 'trans': n = max(n, 1)
            if ('sdwa' in p.mn or 'op_sel' in p.mods) and w & (c.rd | c.wr): n = max(n, 1)
        s = sw(p.wr)
        if s:
            if is_valu(c) and s & c.rd: n = max(n, 4 if c.mn.startswith(('v_readlane', 'v_writelane')) else 2)
            if c.cls.startswith('vmem') and s & c.rd: n = max(n, 5)
            if c.cls in ('salu', 'smem', 'branch') and s & c.rd: n = max(n, 4)
            if c.cls == 'branch' and 'vcc' in s and 'vcc' in c.mn: n = max(n, 5)
        if 'exec' in p.wr:
            if c.cls == 'mfma': n = max(n, 4)
            if is_valu(c): n = max(n, 5 if 'dpp' in c.mn else 4)
    if p.cls == 'mfma':
        d = p.wr
        big = p.passes == 8
        if c.cls == 'mfma':
            if d & (set(c.srcA) | set(c.srcB)): n = max(n, 12 if big else 8)
            if d & set(c.srcC):
                if not (set(c.srcC) == d and c.passes == p.passes): n = max(n, 10 if big else 6)
            if d & c.wr and not (set(c.srcC) == d): n = max(n, 12 if big else 8)
        elif is_valu(c):
            if d & (c.rd | c.wr): n = max(n, 12 if big else 8)
            if set(p.srcC) & c.wr: n = max(n, 7 if big else 3)
        elif c.cls in ('ds', 'vmem', 'vmem_store', 'vmem_lds'):
            if d & (c.rd | c.wr): n = max(n, 12 if big else 8)
    if p.cls == 'vmem_store' and ('x4' in p.mn or 'x3' in p.mn):
        dr = data_regs(p)
        if is_valu(c) and dr & c.wr: n = max(n, 2)
        elif c.cls in ('ds', 'vmem', 'mfma') and dr & c.wr: n = max(n, 1)
    if p.cls in ('salu',) and 'm0' in p.wr and c.cls == 'vmem_lds': n = max(n, 1)
    if p.cls == 'salu' and 'exec' in p.wr:
        if c.cls == 'mfma': n = max(n, 1)
        if is_valu(c) and 'dpp' in c.mn: n = max(n, 1)
    return n

WIN = 14

class Asm:
    def __init__(self):
        self.lines = []
    def e(self, s):
        for l in s.split('\n'):
            l = l.strip()
            if l: self.lines.append(l)
    def __call__(self, s): self.e(s)
    def label(self, l): self.lines.append(l + ':')
    def c(self, s): self.lines.append('; ' + s)

def fix_hazards(lines, verbose=False):
    out = []
    insn = []
    added = 0
    for l in lines:
        if l.startswith(';'):
            out.append((l, None)); continue
        i = Ins(l)
        if i.cls in ('label', 'dir'):
            out.append((l, i)); continue
        dist = 0; req = 0
        for (t, p) in reversed(out):
            if p is None or p.cls in ('dir',): continue
            if p.cls == 'label': continue
            if p.mn in ('s_endpgm',) or p.mn == 's_branch': break
            nn = need(p, i)
            if nn > dist: req = max(req, nn - dist)
            dist += p.states
            if dist >= 20: break
        while req > 0:
            k = min(req, 16)
            nop = Ins('s_nop %d' % (k - 1))
            out.append((nop.text + ' ; hz', nop)); req -= k; added += 1
        out.append((l, i))
    seq = [(t, p) for (t, p) in out if p is not None and p.cls != 'dir']
    pos = {p.label: n for n, (t, p) in enumerate(seq) if p.cls == 'label'}
    errs = []
    for n, (t, p) in enumerate(seq):
        if p.cls == 'branch' and p.target in pos:
            before = []; d = 0; m = n
            while m >= 0 and d < 20:
                q = seq[m][1]
                if q.cls != 'label':
                    before.append(q); d += q.states
                    if m != n and q.mn in ('s_branch', 's_endpgm'): break
                m -= 1
            m = pos[p.target]; da = 0
            while m < len(seq) and da < 20:
                cns = seq[m][1]; m += 1
                if cns.cls == 'label': continue
                dist = da
                for q in before:
                    nn = need(q, cns)
                    if nn > dist: errs.append('edge hazard %s -> %s via %s: need %d have %d' % (q.text, cns.text, p.text, nn, dist))
                    dist += q.states
                da += cns.states
                if cns.mn in ('s_branch', 's_endpgm'): break
    if errs:
        for e_ in errs[:20]: print('HAZARD', e_)
        raise SystemExit('branch-edge hazards')
    if verbose: print('hazard nops added:', added)
    return [t for (t, p) in out]

def check_waits(lines, entry, max_back=2, limit=400000):
    seq = []
    for l in lines:
        if l.startswith(';'): continue
        i = Ins(l)
        if i.cls == 'dir': continue
        seq.append(i)
    pos = {p.label: n for n, p in enumerate(seq) if p.cls == 'label'}
    errs = set()
    steps = [0]
    seen = set()
    def parse_wait(i):
        s = i.text.split(';')[0]
        vm = re.search(r'vmcnt\((\d+)\)', s); lg = re.search(r'lgkmcnt\((\d+)\)', s)
        return (int(vm.group(1)) if vm else None, int(lg.group(1)) if lg else None)
    stack = [(pos[entry], (), (), ())]
    while stack:
        pc, vmq, lgq, bc = stack.pop()
        vmq = list(vmq); lgq = list(lgq); bc = dict(bc)
        while pc < len(seq):
            steps[0] += 1
            if steps[0] > limit: print('check_waits: step limit'); return errs
            i = seq[pc]
            if i.cls == 'label': pc += 1; continue
            if i.mn == 's_endpgm': break
            if i.mn == 's_waitcnt':
                vm, lg = parse_wait(i)
                if vm is not None:
                    while len(vmq) > vm: vmq.pop(0)
                if lg is not None:
                    if any(k == 'smem' for (k, _) in lgq):
                        if lg == 0: lgq = []
                    else:
                        while len(lgq) > lg: lgq.pop(0)
                pc += 1; continue
            touched = i.rd | i.wr
            for (k, regs, txt) in vmq:
                hit = (touched & regs) if i.cls not in ('vmem',) else ((i.rd & regs) | (i.wr & regs if False else set()))
                if k == 'ld' and hit: errs.add('vm: "%s" touches %s pending from "%s"' % (i.text, sorted(hit)[:3], txt))
            for (k, regs) in [(a, b) for (a, b) in lgq]:
                hit = touched & regs[0] if i.cls != 'ds' else (i.rd & regs[0])
                if hit: errs.add('lgkm: "%s" touches %s pending from "%s"' % (i.text, sorted(hit)[:3], regs[1]))
            if i.cls in ('vmem', 'vmem_lds', 'vmem_store') and i.mn not in ('buffer_wbl2', 'buffer_inv'):
                vmq.append(('ld' if i.cls == 'vmem' else 'o', frozenset(i.wr) if i.cls == 'vmem' else frozenset(), i.text))
                if len(vmq) > 63: errs.add('vmcnt overflow at ' + i.text)
            if i.cls == 'ds':
                lgq.append(('ds', (frozenset(i.wr), i.text)))
                if len(lgq) > 15 and False: errs.add('lgkm overflow at ' + i.text)
            if i.cls == 'smem':
                lgq.append(('smem', (frozenset(i.wr), i.text)))
            if i.cls == 'branch':
                tgt = pos.get(i.target)
                if i.mn == 's_branch':
                    if tgt <= pc:
                        c = bc.get(pc, 0)
                        if c >= max_back + 2: break
                        bc[pc] = c + 1
                    pc = tgt; continue
                if tgt <= pc:
                    c = bc.get(pc, 0)
                    if c < max_back:
                        key = (pc + 1, tuple(vmq), tuple(lgq))
                        if key not in seen:
                            seen.add(key); stack.append((pc + 1, tuple(vmq), tuple(lgq), tuple(bc.items())))
                        bc[pc] = c + 1; pc = tgt; continue
                    pc += 1; continue
                else:
                    key = (tgt, tuple(vmq), tuple(lgq))
                    if key not in seen:
                        seen.add(key); stack.append((tgt, tuple(vmq), tuple(lgq), tuple(bc.items())))
                    pc += 1; continue
            pc += 1
    return errs
```

```python
NAME = 'parallel_sum__spectral_gfnet__glu_gated_bilinear__prompt'
S, D, F, DF = 2048, 576, 4608, 289
XN   = 0x0000000; XN_SZ = 128 * 18 * 1024
EF   = 0x0240000; EF_SZ = 18 * 2 * 576 * 32
EI   = 0x0300000; EI_SZ = 576 * 1152
WT   = 0x0400000; WT_SZ = 289 * 8192
XD   = 0x0700000; XD_SZ = 288 * 8192
TT   = 0x0A00000; TT_SZ = 288 * 8192
FC64 = 0x0D00000; FC64_SZ = 32768
FC32 = 0x0D08000; FC32_SZ = 8192
TW1  = 0x0D0C000; TW1_SZ = 16384
TW2  = 0x0D10000; TW2_SZ = 16384
WTF  = 0x4000000; WTF_SZ = 289 * 16384
EIF  = 0x0300000; EIF_SZ = 4 * 18 * 9 * 1024
HH   = 0x1000000; HH_SZ = 128 * 144 * 1024
PP   = 0x2400000; PP_SZ = 8 * 4 * 8 * 2 * 8 * 4608
A_X, A_WR, A_WI, B_X, A_WG, A_WU, A_WD, A_OUT, A_DBG, A_WS = 0, 8, 16, 24, 32, 40, 48, 56, 64, 72
X_SZ = 2048 * 576 * 2
WRI_SZ = 2048 * 289 * 2
WG_SZ = 576 * 4608 * 2
WD_SZ = 4608 * 576 * 2
SRD3 = 0x20000

def srd(a, s, base_lo, base_hi, size, off=0):
    if off:
        a(f's_add_u32 s{s}, s{base_lo}, {hex(off)}')
        a(f's_addc_u32 s{s+1}, s{base_hi}, 0')
    else:
        a(f's_mov_b32 s{s}, s{base_lo}')
        a(f's_mov_b32 s{s+1}, s{base_hi}')
    a(f's_mov_b32 s{s+2}, {hex(size)}')
    a(f's_mov_b32 s{s+3}, {hex(SRD3)}')

def f2u(x):
    import struct
    return struct.unpack('<I', struct.pack('<f', x))[0]

def kdesc(name, vgpr, sgpr=96, accum=None):
    acc = accum if accum is not None else min(256, ((vgpr + 3) // 4) * 4)
    return f'''.amdhsa_kernel {name}
  .amdhsa_next_free_vgpr {vgpr}
  .amdhsa_next_free_sgpr {sgpr}
  .amdhsa_accum_offset {acc}
  .amdhsa_group_segment_fixed_size 0
  .amdhsa_kernarg_size 80
  .amdhsa_user_sgpr_count 2
  .amdhsa_user_sgpr_kernarg_segment_ptr 1
  .amdhsa_system_sgpr_workgroup_id_x 1
  .amdhsa_float_denorm_mode_32 3
.end_amdhsa_kernel
'''

def csel(a, dst, t, f, tmp='s47'):
    a(f's_mov_b32 {dst}, {f}')
    a(f's_mov_b32 {tmp}, {t}')
    a(f's_cselect_b32 {dst}, {tmp}, {dst}')
```

```python
from asmlib import *
from common import *

ACC = 96; BV = 64
NB = 4; PD = 3
AR = 64 - 4 * NB

def breg(ks, j):
    if ks < 16: return f'a[{16*ks+4*j}:{16*ks+4*j+3}]'
    r = BV + 16 * (ks - 16) + 4 * j
    return f'v[{r}:{r+3}]'

class VM:
    def __init__(self): self.q = []
    def add(self, x, tag):
        if x.startswith('buffer') or x.startswith('global'): self.q.append(tag)
    def wait_for(self, tags):
        idx = [i for i, t in enumerate(self.q) if t in tags]
        if not idx: return None
        return len(self.q) - 1 - max(idx)
    def drained(self): self.q = []
    def issue(self, a, x, tag):
        if x.startswith('buffer') or x.startswith('global'):
            if len(self.q) >= 62:
                a('s_waitcnt vmcnt(60)'); self.q = self.q[-60:]
            self.q.append(tag)
        a(x)
    def wait(self, a, tags, extra=''):
        w = self.wait_for(tags)
        if w is None: return
        a(f's_waitcnt vmcnt({w}){extra}'); self.q = self.q[len(self.q)-w:] if w else []

def groups_of(items):
    gl = []; cur = []
    for x in items:
        if x.startswith(('buffer', 'global')):
            cur.append(x); gl.append(cur); cur = []
        elif x.startswith('s_add_u32 m0') or x.startswith('s_mov_b32 m0'):
            cur.append(x)
        else:
            if gl and not cur: gl[-1].append(x)
            else: cur.append(x)
    if cur:
        if gl: gl[-1] += cur
        else: gl.append(cur)
    return gl

class Pass:
    def __init__(self, a, vm):
        self.a = a; self.vm = vm
        self.fcount = 0
    def emit(self, stages, read_items, sync_need, stage_groups, first_ks=0, midf=0, extra=None, nobar=False, tl=None, pre_need=None):
        a = self.a; vm = self.vm
        flat = [(si, F) for si, st in enumerate(stages) for F in range(len(st))]
        base = self.fcount
        def ring(n): return AR + 4 * ((base + n) % NB)
        for n in range(min(PD, len(flat))):
            si, F = flat[n]
            for x in read_items(si, F, ring(n)): a(x)
        n = 0
        for si, st in enumerate(stages):
            queue = []; groups = []
            nf = len(st)
            for F in range(nf):
                ks, t = st[F]
                b = ring(n)
                if n + PD < len(flat):
                    sj, Fj = flat[n + PD]; rds = read_items(sj, Fj, ring(n + PD))
                else: rds = []
                nout = 2 * min(PD - 1, len(flat) - 1 - n)
                if F == 0 and pre_need is not None:
                    pn = pre_need(si)
                    w = vm.wait_for(pn) if pn else None
                    if w is not None and w < 63: a(f's_waitcnt vmcnt({w}) lgkmcnt({nout})')
                    else: a(f's_waitcnt lgkmcnt({nout})')
                else: a(f's_waitcnt lgkmcnt({nout})')
                while groups and groups[0][0] <= F: queue += groups.pop(0)[1]
                if extra: queue += extra(si, F)
                for j in range(4):
                    d = ACC + 16 * t + 4 * j
                    cc = f'v[{d}:{d+3}]' if ks != first_ks else '0'
                    a(f'v_mfma_f32_16x16x32_bf16 v[{d}:{d+3}], v[{b}:{b+3}], {breg(ks, j)}, {cc}')
                    if j < 2 and rds: a(rds[j])
                    elif queue:
                        a(queue.pop(0))
                        if j == 2 and queue and not queue[0].startswith('buffer'): a(queue.pop(0))
                if F == midf:
                    need = sync_need(si)
                    if need is not None:
                        w = vm.wait_for(need)
                        if w is not None: a(f's_waitcnt vmcnt({min(w, 63)})')
                        if not nobar: a('s_barrier')
                    if tl is not None:
                        if tl[0] > 0: a(f'v_writelane_b32 v9, s60, {tl[0]-1}')
                        a('s_memtime s[60:61]'); tl[0] += 1
                    gl = []
                    for tag, items in stage_groups(si):
                        for x in items: vm.add(x, tag)
                        gl += groups_of(items)
                    span = max(1, nf - 1 - midf - 1)
                    for i, g in enumerate(gl):
                        groups.append((midf + 1 + i * span // len(gl), g))
                n += 1
            for _, g in groups: queue += g
            for x in queue: a(x)
        self.fcount = base + len(flat)
```

```python
import sys
sys.path.insert(0, 'dev')
from asmlib import *
from common import *

def build(kernels, path):
    head = []
    for (label, lines, grid, block, lds, vgpr, sgpr) in kernels:
        head.append(f'; @launch kernel={label} grid=({grid},1,1) block=({block},1,1) lds={lds}')
    src = '\n'.join(head) + '\n.amdgcn_target "amdgcn-amd-amdhsa--gfx950"\n.text\n'
    seen = set(); descs = ''
    for (label, lines, grid, block, lds, vgpr, sgpr) in kernels:
        if label in seen: continue
        seen.add(label)
        body = fix_hazards(lines)
        errs = check_waits([label + ':'] + body, label)
        for e in list(errs)[:6]: print('WAITERR', label, e[:200])
        if errs: print('WAITERR count', len(errs))
        src += f'.globl {label}\n.p2align 8\n.type {label},@function\n{label}:\n'
        src += '\n'.join((l if l.endswith(':') else '    ' + l) for l in body) + '\n'
        descs += kdesc(label, vgpr, sgpr)
    src += '.section .rodata,"a"\n.p2align 6\n' + descs.replace('.amdhsa_kernel', '.p2align 6\n.amdhsa_kernel')
    open(path, 'w').write(src)
    return src

if __name__ == '__main__':
    from k0 import gen_k0
    which = sys.argv[1] if len(sys.argv) > 1 else 'all'
    out = sys.argv[2] if len(sys.argv) > 2 else 'out.s'
    ks = [('prep_kernel', gen_k0(), 256, 512, 0, 128, 64)]
    if which != 'k0':
        from k1 import gen_k1, K1_LDS
        ks.append(('gemm1_kernel', gen_k1(diag='diag' in sys.argv), 256, 512, K1_LDS, 256, 96))
    if which not in ('k0', 'k1'):
        from k2 import gen_k2
        ks.append(('fft_kernel', gen_k2(), 289, 64, 0, 256, 96))
    if which not in ('k0', 'k1', 'k2'):
        from k3 import gen_k3, K3_LDS, gen_k4
        ks.append(('gemm2_kernel', gen_k3(), 256, 512, K3_LDS, 256, 96))
        ks.append(('reduce_kernel', gen_k4(), 320, 512, 0, 64, 64))
    build(ks, out)
    print('wrote', out)
```

```python
from asmlib import *
from common import *

def magic_div(d, nmax, bits=24):
    for s in range(8, 32):
        M = -(-(1 << s) // d)
        if M >= (1 << 24) or (nmax - 1) * M >= (1 << 32): continue
        if all((n * M) >> s == n // d for n in range(nmax)): return M, s
    raise ValueError

def trig(a, dst, kcf, df, phase, t0, t1):
    a(f'v_mul_f32 v{t0}, v{kcf}, v{df}')
    a(f'v_mul_f32 v{t1}, s40, v{t0}')
    a(f'v_floor_f32 v{t1}, v{t1}')
    a(f'v_fma_f32 v{t0}, v{t1}, s41, v{t0}')
    a(f'v_fma_f32 v{t0}, v{t0}, s40, v{phase}')
    a(f'v_sin_f32 v{dst}, v{t0}')

def wt_task(a, L, sb='s2', st=''):
    a(f's_lshr_b32 s24, {sb}, 4')
    a(f's_and_b32 s25, {sb}, 15')
    a('s_lshl_b32 s26, s24, 7')
    a('v_add_u32 v1, s26, v0')
    a('v_mul_u32_u24 v2, 578, v1')
    a('s_mul_i32 s27, s25, 36')
    a('v_add_u32 v3, s27, v2')
    a(f'v_add_u32 v4, {64*578}, v3')
    R0, I0, R1, I1 = 16, 26, 36, 46
    for (dst, vo, sr) in ((R0, 3, 12), (I0, 3, 16), (R1, 4, 12), (I1, 4, 16)):
        a(f'buffer_load_dwordx4 v[{dst}:{dst+3}], v{vo}, s[{sr}:{sr+3}], 0 offen')
        a(f'buffer_load_dwordx4 v[{dst+4}:{dst+7}], v{vo}, s[{sr}:{sr+3}], 0 offen offset:16')
        a(f'buffer_load_dword v{dst+8}, v{vo}, s[{sr}:{sr+3}], 0 offen offset:32')
    a(f'v_add_u32 v5, {64*578}, v2')
    a('buffer_load_ushort v56, v2, s[12:15], 0 offen offset:576')
    a('buffer_load_ushort v57, v5, s[12:15], 0 offen offset:576')
    a('buffer_load_ushort v58, v2, s[16:19], 0 offen offset:576')
    a('buffer_load_ushort v59, v5, s[16:19], 0 offen offset:576')
    a('s_lshr_b32 s28, s24, 2\ns_lshl_b32 s28, s28, 1\ns_and_b32 s29, s24, 1\ns_add_u32 s28, s28, s29')
    a('s_lshl_b32 s28, s28, 10')
    a('s_lshr_b32 s29, s24, 1\ns_and_b32 s29, s29, 1\ns_lshl_b32 s29, s29, 9')
    a('s_add_u32 s28, s28, s29')
    a('v_lshrrev_b32 v6, 5, v0\nv_lshlrev_b32 v6, 13, v6')
    a('v_and_b32 v7, 31, v0\nv_lshl_add_u32 v6, v7, 4, v6')
    a('v_add_u32 v6, s28, v6')
    a('s_mul_i32 s30, s25, 18\ns_lshl_b32 s30, s30, 14')
    a('s_mov_b32 s33, 0xffff0000')
    a('s_cmp_eq_u32 s25, 0')
    a('s_cselect_b32 s32, 0.5, 1.0')
    a('s_waitcnt vmcnt(0)')
    for c in range(18):
        t = 60 + 4 * (c & 1)
        for n, src in enumerate((R0, R1, I0, I1)):
            if c & 1: a(f'v_and_b32 v{t+n}, s33, v{src+(c>>1)}')
            else: a(f'v_lshlrev_b32 v{t+n}, 16, v{src+(c>>1)}')
        if c == 0:
            for n in range(4): a(f'v_mul_f32 v{t+n}, s32, v{t+n}')
        a(f'buffer_store_dwordx4 v[{t}:{t+3}], v6, s[20:23], s30 offen {st}')
        a('s_add_u32 s30, s30, 16384')
    a('s_cmp_eq_u32 s25, 15')
    a(f's_cbranch_scc0 {L}_wtd')
    for n in range(4):
        a(f'v_lshlrev_b32 v{68+n}, 16, v{56+n}')
        a(f'v_mul_f32 v{68+n}, 0.5, v{68+n}')
    a(f's_mov_b32 s30, {288*16384}')
    a(f'buffer_store_dwordx4 v[68:71], v6, s[20:23], s30 offen {st}')
    a.label(f'{L}_wtd')

def eif_entry(a, ve, vo, srd_='s[16:19]', st=''):
    a(f'v_and_b32 v4, 3, v{ve}')
    a(f'v_bfe_u32 v5, v{ve}, 2, 6')
    a(f'v_lshrrev_b32 v6, 8, v{ve}')
    a('v_mul_u32_u24 v7, 7282, v6\nv_lshrrev_b32 v7, 16, v7')
    a('v_mul_u32_u24 v8, 9, v7\nv_sub_u32 v8, v6, v8')
    a('v_mul_u32_u24 v9, 3641, v7\nv_lshrrev_b32 v9, 16, v9')
    a('v_mul_u32_u24 v10, 18, v9\nv_sub_u32 v10, v7, v10')
    a('v_lshrrev_b32 v11, 4, v5')
    a('v_lshlrev_b32 v10, 4, v10')
    a('v_lshl_add_u32 v10, v11, 2, v10')
    a('v_add_u32 v10, v10, v4')
    a('v_mul_u32_u24 v11, 80, v9\nv_add_u32 v11, 256, v11')
    a('v_lshlrev_b32 v12, 6, v9\nv_subrev_u32 v12, 80, v12')
    a('v_cmp_gt_u32 vcc, 5, v8')
    a('v_cndmask_b32 v11, v12, v11, vcc')
    a('v_lshl_add_u32 v11, v8, 4, v11')
    a('v_and_b32 v12, 15, v5')
    a('v_add_u32 v11, v11, v12')
    a('v_cvt_f32_u32 v9, v11')
    a('v_cvt_f32_u32 v11, v10')
    a('v_mov_b32 v12, 0.5')
    a('v_cmp_eq_u32 vcc, 0, v10')
    a('v_mov_b32 v14, 0x43900000')
    a('v_cndmask_b32 v15, v11, v14, vcc')
    a('v_cndmask_b32 v12, v12, v13, vcc')
    trig(a, 20, 11, 9, 13, 16, 17)
    trig(a, 21, 15, 9, 12, 18, 19)
    a('v_cvt_pk_bf16_f32 v20, v20, v21')
    a(f'buffer_store_dword v20, v{vo}, {srd_}, 0 offen {st}')

def small_tables(a, L, sw, st=''):
    a(f's_cmp_ge_u32 {sw}, 192')
    a(f's_cbranch_scc1 {L}_tabd')
    a(f's_cmp_ge_u32 {sw}, 160')
    a(f's_cbranch_scc1 {L}_tw')
    a(f's_cmp_ge_u32 {sw}, 128')
    csel(a, 's23', hex(f2u(1.0/32)), hex(f2u(1.0/64)))
    csel(a, 's26', 128, 0)
    csel(a, 's24', 10, 12)
    a(f's_add_u32 s12, s6, {hex(FC64)}\ns_addc_u32 s13, s7, 0')
    a(f's_mov_b32 s14, {160*256}\ns_mov_b32 s15, {hex(SRD3)}')
    a(f's_sub_u32 s27, {sw}, s26')
    a('s_lshl_b32 s27, s27, 6')
    a('v_add_u32 v4, s27, v0')
    a('v_lshrrev_b32 v3, s24, v4')
    a('v_and_b32 v5, 3, v4')
    a('v_bfe_u32 v6, v4, 2, 6')
    a('s_sub_u32 s24, s24, 8')
    a('v_bfe_u32 v7, v4, 8, s24')
    a('v_and_b32 v8, 31, v6')
    a('v_lshrrev_b32 v9, 3, v7')
    a('v_lshl_add_u32 v8, v9, 5, v8')
    a('v_and_b32 v9, 7, v7')
    a('v_lshrrev_b32 v10, 5, v6')
    a('v_lshlrev_b32 v9, 3, v9')
    a('v_lshl_add_u32 v9, v10, 2, v9')
    a('v_add_u32 v9, v9, v5')
    a('v_mul_u32_u24 v8, v8, v9')
    a('v_cvt_f32_u32 v8, v8')
    a('v_mul_f32 v8, s23, v8')
    a('v_fract_f32 v8, v8')
    a('v_cos_f32 v10, v8')
    a('v_sin_f32 v11, v8')
    a('v_cmp_eq_u32 vcc, 1, v3')
    a('v_sub_f32 v12, 0, v11')
    a('v_cndmask_b32 v14, v10, v12, vcc')
    a('v_cndmask_b32 v15, v11, v10, vcc')
    a('v_cvt_pk_bf16_f32 v10, v14, v15')
    a(f's_lshl_b32 s27, {sw}, 8')
    a('v_lshl_add_u32 v12, v0, 2, s27')
    a(f'buffer_store_dword v10, v12, s[12:15], 0 offen {st}')
    a(f's_branch {L}_tabd')
    a.label(f'{L}_tw')
    a(f's_cmp_ge_u32 {sw}, 176')
    csel(a, 's22', TW2, TW1)
    csel(a, 's26', 176, 160)
    a(f's_cselect_b32 s23, 1.0, {hex(f2u(2.0/(576*2048)))}')
    a('s_cselect_b64 vcc, -1, 0')
    a('s_add_u32 s12, s6, s22\ns_addc_u32 s13, s7, 0')
    a(f's_mov_b32 s14, 16384\ns_mov_b32 s15, {hex(SRD3)}')
    a(f's_sub_u32 s27, {sw}, s26')
    a('s_lshl_b32 s27, s27, 6')
    a('v_add_u32 v4, s27, v0')
    a('v_and_b32 v6, 63, v4')
    a('v_bfe_u32 v7, v4, 6, 3')
    a('v_lshrrev_b32 v8, 9, v4')
    a('v_lshlrev_b32 v8, 5, v8')
    a('v_lshrrev_b32 v9, 1, v7')
    a('v_and_b32 v10, 1, v7\nv_lshlrev_b32 v10, 1, v10')
    a('v_lshrrev_b32 v11, 5, v6')
    a('v_lshl_add_u32 v10, v11, 2, v10')
    a('v_lshl_add_u32 v10, v9, 3, v10')
    a('v_and_b32 v11, 31, v6')
    for w in range(2):
        a(f'v_add_u32 v12, {w}, v10')
        a('v_cndmask_b32 v13, v12, v11, vcc')
        a('v_mul_u32_u24 v13, v8, v13')
        a('v_mul_u32_u24 v12, v12, v11')
        a('v_add_u32 v12, v12, v13')
        a('v_cvt_f32_u32 v12, v12')
        a(f'v_mul_f32 v12, {hex(f2u(1.0/2048))}, v12')
        a(f'v_cos_f32 v{16+w}, v12')
        a(f'v_sin_f32 v{18+w}, v12')
    for r in range(16, 20): a(f'v_mul_f32 v{r}, s23, v{r}')
    a('v_lshlrev_b32 v12, 4, v4')
    a(f'buffer_store_dwordx4 v[16:19], v12, s[12:15], 0 offen {st}')
    a.label(f'{L}_tabd')

def gen_k0():
    a = Asm()
    L = 'K0'
    a(f's_cmp_ge_u32 s2, 256')
    a(f's_cbranch_scc1 {L}_end')
    a(f's_load_dwordx2 s[4:5], s[0:1], {A_X}')
    a(f's_load_dwordx4 s[8:11], s[0:1], {A_WR}')
    a(f's_load_dwordx2 s[6:7], s[0:1], {A_WS}')
    a('v_lshrrev_b32 v1, 6, v0')
    a('v_and_b32 v0, 63, v0')
    a('v_readfirstlane_b32 s3, v1')
    a('s_waitcnt lgkmcnt(0)')
    a('s_cmp_eq_u32 s3, 0')
    a(f's_cbranch_scc1 {L}_ln')
    a('s_cmp_eq_u32 s3, 1')
    a(f's_cbranch_scc1 {L}_wt')
    a(f's_branch {L}_tab')

    a.label(f'{L}_ln')
    srd(a, 12, 4, 5, X_SZ)
    srd(a, 16, 6, 7, XN_SZ, XN)
    a('v_lshrrev_b32 v1, 3, v0')
    a('v_and_b32 v2, 7, v0')
    a('s_lshl_b32 s20, s2, 3')
    a('v_add_u32 v3, s20, v1')
    a('v_mul_u32_u24 v3, 1152, v3')
    a('v_lshrrev_b32 v4, 2, v2')
    a('v_and_b32 v5, 3, v2')
    a('v_lshl_add_u32 v3, v4, 6, v3')
    a('v_lshl_add_u32 v3, v5, 3, v3')
    X = 16
    for i in range(9):
        a(f'buffer_load_dwordx2 v[{X+4*i}:{X+4*i+1}], v3, s[12:15], 0 offen offset:{128*i}')
        a(f'buffer_load_dwordx2 v[{X+4*i+2}:{X+4*i+3}], v3, s[12:15], 0 offen offset:{128*i+32}')
    a('s_lshr_b32 s21, s2, 1')
    a('s_mul_i32 s21, s21, 18432')
    a('s_and_b32 s22, s2, 1')
    a('s_lshl_b32 s22, s22, 7')
    a('s_add_u32 s21, s21, s22')
    a('v_lshlrev_b32 v6, 10, v4')
    a('v_lshl_add_u32 v6, v5, 8, v6')
    a('v_lshl_add_u32 v6, v1, 4, v6')
    a('v_add_u32 v6, s21, v6')
    a('v_mov_b32 v7, 0x3f803f80')
    a('v_mov_b32 v8, 0')
    a('v_mov_b32 v9, 0')
    a('s_mov_b32 s24, 0xffff0000')
    for i in range(9):
        a(f's_waitcnt vmcnt({16-2*i})')
        for r in range(4):
            acc = 8 + (r & 1)
            a(f'v_dot2_f32_bf16 v{acc}, v{X+4*i+r}, v7, v{acc}')
    a('s_nop 3')
    a('v_add_f32 v8, v8, v9')
    def red8(v):
        a(f'v_add_f32_dpp v{v}, v{v}, v{v} quad_perm:[1,0,3,2] row_mask:0xf bank_mask:0xf')
        a(f'v_add_f32_dpp v{v}, v{v}, v{v} quad_perm:[2,3,0,1] row_mask:0xf bank_mask:0xf')
        a(f'v_add_f32_dpp v{v}, v{v}, v{v} row_half_mirror row_mask:0xf bank_mask:0xf')
    red8(8)
    a(f's_mov_b32 s25, {hex(f2u(1.0/576))}')
    a('v_mul_f32 v8, s25, v8')
    a('v_cvt_pk_bf16_f32 v9, v8, v8')
    a('v_lshlrev_b32 v9, 16, v9')
    a('v_sub_f32 v10, v8, v9')
    C = 56
    a('v_mov_b32 v11, 0\nv_mov_b32 v12, 0')
    for i in range(36):
        a(f'v_lshlrev_b32 v{C+2*i}, 16, v{X+i}')
        a(f'v_and_b32 v{C+2*i+1}, s24, v{X+i}')
        a(f'v_sub_f32 v{C+2*i}, v{C+2*i}, v9')
        a(f'v_sub_f32 v{C+2*i+1}, v{C+2*i+1}, v9')
        a(f'v_fmac_f32 v11, v{C+2*i}, v{C+2*i}')
        a(f'v_fmac_f32 v12, v{C+2*i+1}, v{C+2*i+1}')
    a('v_add_f32 v11, v11, v12')
    red8(11)
    a('v_mul_f32 v11, s25, v11')
    a('v_fma_f32 v11, -v10, v10, v11')
    a('v_max_f32 v11, 0, v11')
    a('v_cvt_pk_bf16_f32 v11, v11, v11')
    a('v_lshlrev_b32 v11, 16, v11')
    a(f'v_add_f32 v11, {hex(f2u(1e-5))}, v11')
    a('v_cvt_pk_bf16_f32 v11, v11, v11')
    a('v_lshlrev_b32 v11, 16, v11')
    a('v_sqrt_f32 v11, v11')
    a('v_cvt_pk_bf16_f32 v11, v11, v11')
    a('v_lshlrev_b32 v11, 16, v11')
    a('v_rcp_f32 v11, v11')
    for i in range(9):
        for r in range(4):
            k = 4 * i + r
            a(f'v_mul_f32 v{C+2*k}, v11, v{C+2*k}')
            a(f'v_mul_f32 v{C+2*k+1}, v11, v{C+2*k+1}')
            a(f'v_cvt_pk_bf16_f32 v{X+k}, v{C+2*k}, v{C+2*k+1}')
        a(f'buffer_store_dwordx4 v[{X+4*i}:{X+4*i+3}], v6, s[16:19], 0 offen offset:{2048*i}' if 2048 * i < 4096 else
          f's_mov_b32 s26, {2048*i}\nbuffer_store_dwordx4 v[{X+4*i}:{X+4*i+3}], v6, s[16:19], s26 offen')
    a('s_endpgm')

    a.label(f'{L}_wt')
    srd(a, 12, 8, 9, WRI_SZ)
    srd(a, 16, 10, 11, WRI_SZ)
    srd(a, 20, 6, 7, WTF_SZ, WTF)
    wt_task(a, L)
    a('s_endpgm')

    a.label(f'{L}_tab')
    srd(a, 12, 6, 7, EF_SZ, EF)
    srd(a, 16, 6, 7, EIF_SZ, EIF)
    a('s_mul_i32 s20, s2, 6')
    a('s_add_u32 s20, s20, s3')
    a('s_sub_u32 s20, s20, 2')
    a('s_lshl_b32 s21, s20, 6')
    a('v_add_u32 v1, s21, v0')
    a(f's_mov_b32 s40, {hex(f2u(1.0/576))}\ns_mov_b32 s41, {hex(f2u(-576.0))}')
    M576, S576 = magic_div(576, 165888 // 8 + 98304 // 8 + 64)
    M288, S288 = magic_div(288, 2 * 98304 + 64) if False else (None, None)
    for it in range(2):
        a(f'v_add_u32 v2, {98304*it}, v1')
        a('v_and_b32 v3, 7, v2')
        a('v_lshrrev_b32 v4, 3, v2')
        a(f'v_mul_u32_u24 v5, {M576}, v4')
        a(f'v_lshrrev_b32 v5, {S576}, v5')
        a('v_mul_u32_u24 v6, 576, v5')
        a('v_sub_u32 v6, v4, v6')
        a('v_lshrrev_b32 v7, 1, v5')
        a('v_and_b32 v8, 1, v5')
        a('v_lshlrev_b32 v7, 4, v7')
        a('v_lshl_add_u32 v7, v3, 1, v7')
        a('v_cvt_f32_u32 v9, v6')
        a('v_cvt_f32_u32 v10, v7')
        a('v_add_f32 v11, 1.0, v10')
        a('v_cvt_f32_u32 v12, v8')
        a('v_mov_b32 v13, 0x3e800000')
        a('v_fma_f32 v12, v12, v13, v13')
        a('v_cmp_eq_u32 vcc, 0, v7')
        a('v_cmp_eq_u32 s[42:43], 1, v8')
        a('s_and_b64 vcc, vcc, s[42:43]')
        a('v_mov_b32 v14, 0x43900000')
        a('v_cndmask_b32 v10, v10, v14, vcc')
        a('v_cndmask_b32 v15, v12, v13, vcc')
        trig(a, 20, 10, 9, 15, 16, 17)
        trig(a, 21, 11, 9, 12, 18, 19)
        a('v_cvt_pk_bf16_f32 v20, v20, v21')
        a('v_lshlrev_b32 v22, 2, v2')
        a('buffer_store_dword v20, v22, s[12:15], 0 offen')
        eif_entry(a, 2, 22)
    small_tables(a, L, 's20')
    a.label(f'{L}_end')
    a('s_endpgm')
    return a.lines
```

```python
from asmlib import *
from common import *

R = 4
SLOT = 20480
DUMMY = R * SLOT
K1_LDS = R * SLOT + 1024
NB = 6
PD = 5
MID = 9
NFR = 20

ACC = 96
BB = 72
AA = 48
vVG, vVX, vB0, vB1, vLA, vLE, vA_cur, vA_nxt, vE_cur, vE_nxt = 10, 11, 12, 13, 14, 15, 16, 17, 18, 19

def wgmap(a, sb, smg, sq, scc, t='s46'):
    a(f's_lshr_b32 {t}, {sb}, 3')
    a(f's_and_b32 {scc}, {t}, 3')
    a(f's_lshr_b32 {smg}, {t}, 2')
    a(f's_and_b32 {smg}, {smg}, 3')
    a(f's_and_b32 s47, {sb}, 1')
    a(f's_lshl_b32 s47, s47, 2')
    a(f's_add_u32 {smg}, {smg}, s47')
    a(f's_lshr_b32 {sq}, {t}, 4')
    a(f's_lshr_b32 s47, {sb}, 1')
    a(f's_and_b32 s47, s47, 3')
    a(f's_lshl_b32 s47, s47, 1')
    a(f's_add_u32 {sq}, {sq}, s47')

def frag_addr(f):
    if f < 18:
        u = f >> 1; p = f & 1
        o = p * 9216 + u * 32
        return 'A', o, o + 4608
    o = 18432 + (f - 18) * 1024
    return 'E', o, o + 512

def acc_reg(f, j):
    if f < 18: return ACC + 16 * (f >> 1) + 8 * (f & 1) + 4 * j
    return ACC + 144 + 8 * (f - 18) + 4 * j

def stamp(a, idx):
    a(f's_memtime s[{60+4*idx}:{61+4*idx}]')
    a(f's_memrealtime s[{62+4*idx}:{63+4*idx}]')
    a('s_waitcnt lgkmcnt(0)')

def gen_k1(diag=False, nodma=False, nob=False, nobar=False, name='K1'):
    a = Asm()
    L = name
    a('s_cmp_ge_u32 s2, 256')
    a(f's_cbranch_scc1 {L}_end')
    if diag: stamp(a, 0)
    a(f's_load_dwordx4 s[4:7], s[0:1], {A_WG}')
    a(f's_load_dwordx2 s[8:9], s[0:1], {A_WS}')
    a('v_lshrrev_b32 v1, 6, v0')
    a('v_and_b32 v0, 63, v0')
    a('v_readfirstlane_b32 s3, v1')
    wgmap(a, 's2', 's40', 's41', 's42')
    a('s_lshl_b32 s43, s41, 2\ns_add_u32 s43, s43, s42')
    a('s_min_u32 s44, s43, 17')
    a('s_waitcnt lgkmcnt(0)')
    srd(a, 12, 4, 5, WG_SZ)
    srd(a, 16, 6, 7, WG_SZ)
    srd(a, 20, 8, 9, XN_SZ, XN)
    a(f's_add_u32 s28, s8, {hex(EF)}\ns_addc_u32 s29, s9, 0')
    a('s_cmp_eq_u32 s3, 0')
    a('s_cselect_b32 s24, s4, s28\ns_cselect_b32 s25, s5, s29')
    a('s_cmp_eq_u32 s3, 1')
    a('s_cselect_b32 s24, s6, s24\ns_cselect_b32 s25, s7, s25')
    a('s_cmp_lt_u32 s3, 2')
    csel(a, 's26', hex(WG_SZ), hex(EF_SZ))
    a('s_cmp_lt_u32 s3, 4')
    a('s_cselect_b32 s26, s26, 0')
    a('s_cselect_b32 s39, -1, 0')
    a(f's_mov_b32 s27, {hex(SRD3)}')
    a('s_mul_i32 s30, s43, 288')
    a('s_mul_i32 s31, s44, 36864')
    a('s_cmp_lt_u32 s3, 2')
    a('s_cselect_b32 s31, s30, s31')
    csel(a, 's32', 294912, 1024)
    a('s_mul_i32 s33, s40, 294912')
    a('s_lshl_b32 s34, s3, 10')
    a('s_add_u32 s35, s34, 9216')
    a(f's_mov_b32 s36, {DUMMY}')
    for w, o in ((0, 8192), (1, 17408), (2, 18432), (3, 19456)):
        a(f's_cmp_eq_u32 s3, {w}')
        a(f's_cselect_b32 s36, {o}, s36')
    a('s_lshl_b32 s45, s3, 6')
    a('v_add_u32 v2, s45, v0')
    a('v_mul_u32_u24 v3, 3641, v2\nv_lshrrev_b32 v3, 16, v3')
    a('v_mul_u32_u24 v4, 18, v3\nv_sub_u32 v4, v2, v4')
    a('v_mul_u32_u24 v3, 9216, v3')
    a(f'v_lshl_add_u32 v{vVG}, v4, 4, v3')
    a('v_add_u32 v2, 512, v0')
    a('v_mul_u32_u24 v3, 3641, v2\nv_lshrrev_b32 v3, 16, v3')
    a('v_mul_u32_u24 v4, 18, v3\nv_sub_u32 v4, v2, v4')
    a('v_mul_u32_u24 v3, 9216, v3')
    a('v_lshl_add_u32 v5, v4, 4, v3')
    a('s_cmp_eq_u32 s3, 3')
    a('s_cselect_b32 s45, 18432, 0')
    a('v_lshlrev_b32 v6, 4, v0')
    a('v_add_u32 v7, s45, v6')
    a('s_cmp_lt_u32 s3, 2')
    a('s_cselect_b64 vcc, -1, 0')
    a(f'v_cndmask_b32 v{vVX}, v7, v5, vcc')
    a('s_mul_i32 s45, s3, 36864')
    a(f'v_add_u32 v{vB0}, s45, v6')
    a(f'v_add_u32 v{vB1}, 18432, v{vB0}')
    a('v_lshrrev_b32 v2, 4, v0')
    a('v_bfe_u32 v3, v0, 2, 2')
    a('v_lshl_add_u32 v2, v2, 2, v3')
    a('v_and_b32 v3, 3, v0')
    a('v_lshlrev_b32 v3, 3, v3')
    a(f'v_mul_u32_u24 v{vLA}, 288, v2')
    a(f'v_add_u32 v{vLA}, v{vLA}, v3')
    a(f'v_lshl_add_u32 v{vLE}, v2, 5, v3')
    for p in range(512):
        assert (p * 3641) >> 16 == p // 18
    for p in range(512, 576):
        assert (p * 3641) >> 16 == p // 18

    sWR, sKB = 's37', 's38'
    def issue_B(buf):
        a(f'buffer_load_dwordx4 v[{BB+8*buf}:{BB+8*buf+3}], v{vB0}, s[20:23], s33 offen')
        a(f'buffer_load_dwordx4 v[{BB+8*buf+4}:{BB+8*buf+7}], v{vB1}, s[20:23], s33 offen')
        a('s_add_u32 s33, s33, 1024')
    def issue_D():
        a(f's_add_u32 m0, {sWR}, s34')
        a(f's_and_b32 s45, {sWR}, s39')
        a(f'buffer_load_dwordx4 v{vVG}, s[12:15], s30 offen lds')
        a(f's_add_u32 m0, {sWR}, s35')
        a(f's_add_u32 s45, s45, s36')
        a(f'buffer_load_dwordx4 v{vVG}, s[16:19], s30 offen lds')
        a('s_mov_b32 m0, s45')
        a('s_add_u32 s30, s30, 294912')
        a(f'buffer_load_dwordx4 v{vVX}, s[24:27], s31 offen lds')
        a('s_add_u32 s31, s31, s32')
        a(f's_add_u32 {sWR}, {sWR}, {SLOT}')
        a(f's_cmp_eq_u32 {sWR}, {R*SLOT}')
        a(f's_cselect_b32 {sWR}, 0, {sWR}')
    a(f's_mov_b32 {sWR}, 0')
    nb = 0
    for t in range(-(R - 1), 0):
        if t + 2 >= 0:
            issue_B(t + 2); nb += 1
        issue_D()
    for r in range(ACC, 256):
        a(f'v_mov_b32 v{r}, 0')
    a(f's_mov_b32 s48, {SLOT}')
    a(f'v_mov_b32 v{vA_cur}, v{vLA}\nv_mov_b32 v{vE_cur}, v{vLE}')
    a(f'v_add_u32 v{vA_nxt}, s48, v{vLA}\nv_add_u32 v{vE_nxt}, s48, v{vLE}')
    after_d0 = sum((5 if t + 2 >= 0 else 3) for t in range(-(R - 1) + 1, 0))
    a(f's_waitcnt vmcnt({after_d0})')
    a('s_barrier')
    def rd(F, f, nxt):
        kind, o1, o2 = frag_addr(f)
        base = (vA_nxt if nxt else vA_cur) if kind == 'A' else (vE_nxt if nxt else vE_cur)
        b = AA + 4 * (F % NB)
        a(f'ds_read_b64_tr_b16 v[{b}:{b+1}], v{base} offset:{o1}')
        a(f'ds_read_b64_tr_b16 v[{b+2}:{b+3}], v{base} offset:{o2}')
    for f in range(PD):
        rd(f, f, False)
    if diag: stamp(a, 1)
    a('s_mov_b32 s49, 6')
    a.label(f'{L}_loop')
    N1 = 5 * (R - 3)
    for st in range(3):
        for f in range(NFR):
            F = st * NFR + f
            if f == 0 and not (nodma or nob):
                a('s_waitcnt vmcnt(8)')
            fp = f + PD
            if fp < NFR: rd(F + PD, fp, False)
            else: rd(F + PD, fp - NFR, True)
            a(f's_waitcnt lgkmcnt({2*PD})')
            b = AA + 4 * (F % NB)
            for j in range(2):
                d = acc_reg(f, j); bb = BB + 8 * st + 4 * j
                a(f'v_mfma_f32_16x16x32_bf16 v[{d}:{d+3}], v[{b}:{b+3}], v[{bb}:{bb+3}], v[{d}:{d+3}]')
            if f == MID:
                if not (nodma and nob): a(f's_waitcnt vmcnt({N1 if not (nodma or nob) else 0})')
                if not nobar: a('s_barrier')
                if not nob: issue_B((st + 2) % 3)
                if not nodma: issue_D()
            if f == NFR - 1:
                a(f's_add_u32 s48, s48, {SLOT}')
                a(f's_cmp_eq_u32 s48, {R*SLOT}')
                a('s_cselect_b32 s48, 0, s48')
                a(f'v_mov_b32 v{vA_cur}, v{vA_nxt}\nv_mov_b32 v{vE_cur}, v{vE_nxt}')
                a(f'v_add_u32 v{vA_nxt}, s48, v{vLA}\nv_add_u32 v{vE_nxt}, s48, v{vLE}')
    a('s_sub_u32 s49, s49, 1')
    a('s_cmp_lg_u32 s49, 0')
    a(f's_cbranch_scc1 {L}_loop')
    if diag: stamp(a, 2)
    a('s_waitcnt vmcnt(0) lgkmcnt(0)')

    srd(a, 12, 8, 9, HH_SZ, HH)
    srd(a, 16, 8, 9, XD_SZ, XD)
    a('s_lshl_b32 s45, s40, 4\ns_lshl_b32 s46, s3, 1\ns_add_u32 s45, s45, s46')
    a('s_mul_i32 s50, s45, 147456')
    a('s_mul_i32 s46, s41, 18432')
    a('s_add_u32 s50, s50, s46')
    a('s_lshl_b32 s46, s42, 12')
    a('s_add_u32 s51, s50, s46')
    a('s_lshr_b32 s46, s42, 1\ns_add_u32 s46, s46, 16\ns_lshl_b32 s46, s46, 10')
    a('s_add_u32 s52, s50, s46')
    a('s_and_b32 s46, s42, 1\ns_lshl_b32 s46, s46, 3')
    a('s_add_u32 s52, s52, s46')
    a('v_lshlrev_b32 v2, 4, v0')
    T = 20
    def hreg(u, j, dst):
        g = ACC + 16 * u + 4 * j; uu = g + 8
        for r in range(4):
            a(f'v_mul_f32 v{g+r}, v{g+r}, v{uu+r}')
        a(f'v_cvt_pk_bf16_f32 v{dst}, v{g}, v{g+1}')
        a(f'v_cvt_pk_bf16_f32 v{dst+1}, v{g+2}, v{g+3}')
    n = 0
    for j in range(2):
        if j == 1:
            a('s_add_u32 s51, s51, 147456\ns_add_u32 s52, s52, 147456')
        for i in range(4):
            t = T + 4 * (n % 8); n += 1
            hreg(2 * i, j, t); hreg(2 * i + 1, j, t + 2)
            a(f'buffer_store_dwordx4 v[{t}:{t+3}], v2, s[12:15], s51 offen offset:{1024*i}')
        t = T + 4 * (n % 8); n += 1
        hreg(8, j, t)
        a(f'buffer_store_dwordx2 v[{t}:{t+1}], v2, s[12:15], s52 offen')
    if diag:
        a('s_waitcnt vmcnt(0)')
        stamp(a, 3)
        a(f's_load_dwordx2 s[4:5], s[0:1], {A_WS}')
        a('s_waitcnt lgkmcnt(0)')
        srd(a, 24, 4, 5, 0x10000000, 0)
        a('s_lshl_b32 s46, s2, 3\ns_add_u32 s46, s46, s3\ns_lshl_b32 s46, s46, 6\ns_add_u32 s46, s46, 0x8000000')
        for i in range(16):
            a(f'v_mov_b32 v{60+i}, s{60+i}')
        a('v_mov_b32 v2, 0')
        a('s_mov_b64 exec, 1')
        for i in range(4):
            a(f'buffer_store_dwordx4 v[{60+4*i}:{63+4*i}], v2, s[24:27], s46 offen offset:{16*i}')
        a('s_mov_b64 exec, -1')
    a('s_cmp_ge_u32 s43, 18')
    a(f's_cbranch_scc1 {L}_end')
    a('v_lshrrev_b32 v3, 4, v0')
    a('v_lshlrev_b32 v3, 15, v3')
    a('v_and_b32 v4, 15, v0')
    a('v_lshl_add_u32 v3, v4, 2, v3')
    a('s_lshl_b32 s45, s44, 17')
    a('s_lshl_b32 s46, s40, 10')
    a('s_add_u32 s45, s45, s46')
    a('s_lshl_b32 s46, s3, 7')
    a('s_add_u32 s45, s45, s46')
    for r in range(4):
        for j in range(2):
            re = ACC + 144 + 4 * j + r; im = re + 8
            t = 56 + 2 * r + j
            a(f'v_cvt_pk_bf16_f32 v{t}, v{re}, v{im}')
            a(f'buffer_store_dword v{t}, v3, s[16:19], s45 offen offset:{64*j}')
        a('s_add_u32 s45, s45, 8192')
    a.label(f'{L}_end')
    a('s_endpgm')
    return a.lines
```

```python
from asmlib import *
from common import *
from gemm_core import *
from k1 import wgmap, stamp

SLOT = 20480
vD1 = 10
vD2 = 22
vBO = 16
vS1 = 28
vE = 36
vS2 = 38

def p1_setup(a, R):
    a('s_and_b32 s44, s3, 1')
    a('s_cmp_eq_u32 s44, 0')
    a('s_cselect_b32 s12, s4, s6\ns_cselect_b32 s13, s5, s7')
    a(f's_mov_b32 s14, {hex(WG_SZ)}\ns_mov_b32 s15, {hex(SRD3)}')
    srd(a, 20, 8, 9, XN_SZ, XN)
    srd(a, 24, 8, 9, EF_SZ, EF)
    a('s_mul_i32 s32, s41, 1152')
    a('s_lshl_b32 s45, s42, 7')
    a('s_add_u32 s32, s32, s45')
    a('s_lshr_b32 s45, s3, 1')
    a('s_mul_i32 s45, s45, 294912')
    a('s_add_u32 s32, s32, s45')
    a('s_mul_i32 s33, s40, 294912')
    a('v_lshrrev_b32 v2, 3, v0')
    a('v_bfe_u32 v3, v0, 1, 2')
    a('v_bfe_u32 v4, v0, 4, 2')
    a('v_xor_b32 v3, v3, v4')
    a('v_and_b32 v4, 1, v0')
    a('v_lshlrev_b32 v3, 5, v3')
    a('v_lshl_add_u32 v3, v4, 4, v3')
    a('v_mul_u32_u24 v2, 9216, v2')
    a(f'v_add_u32 v{vD1}, v2, v3')
    for i in range(1, 4): a(f'v_add_u32 v{vD1+i}, {8*9216}, v{vD1+i-1}')
    a('v_lshlrev_b32 v6, 4, v0')
    a('s_mul_i32 s45, s44, 18432')
    a('s_lshr_b32 s46, s3, 1\ns_lshl_b32 s46, s46, 10\ns_add_u32 s45, s45, s46')
    a(f'v_add_u32 v{vD1+4}, s45, v6')
    a('s_min_u32 s45, s43, 17\ns_mul_i32 s35, s45, 36864')
    for i in range(5):
        a(f'v_add_u32 v2, {64*i}, v0')
        a('v_mul_u32_u24 v3, 6554, v2\nv_lshrrev_b32 v3, 16, v3')
        a('v_mul_u32_u24 v4, 10, v3\nv_sub_u32 v4, v2, v4')
        a('v_mul_u32_u24 v3, 9216, v3')
        a(f'v_lshl_add_u32 v{vD2+i}, v4, 4, v3')
    a('s_mul_i32 s45, s3, 73728')
    a(f'v_add_u32 v{vBO}, s45, v6')
    for j in range(1, 4): a(f'v_add_u32 v{vBO+j}, 18432, v{vBO+j-1}')
    a('v_lshrrev_b32 v2, 4, v0')
    a('v_bfe_u32 v3, v0, 2, 2')
    a('v_lshl_add_u32 v2, v2, 2, v3')
    a('v_and_b32 v3, 3, v0')
    a('v_lshlrev_b32 v3, 3, v3')
    a('v_bfe_u32 v4, v2, 1, 2')
    a('v_lshlrev_b32 v5, 7, v2')
    a('v_add_u32 v5, v5, v3')
    for u in range(4):
        a(f'v_xor_b32 v7, {u}, v4')
        a(f'v_lshl_add_u32 v{vS1+u}, v7, 5, v5')
        a(f'v_add_u32 v{vS1+4+u}, {3*SLOT}, v{vS1+u}')
    a(f'v_lshl_add_u32 v{vE}, v2, 5, v3')
    a(f'v_add_u32 v{vE+1}, {3*SLOT}, v{vE}')
    a(f'v_mul_u32_u24 v{vS2}, 160, v2')
    a(f'v_add_u32 v{vS2}, v{vS2}, v3')
    a(f'v_add_u32 v{vS2+1}, {3*SLOT}, v{vS2}')
    a('s_lshl_b32 s34, s3, 12')
    a('s_lshl_b32 s36, s3, 10\ns_add_u32 s36, s36, 16384')
    a('s_mul_i32 s37, s3, 5120')

def D_items(G, R, hasE, last=18):
    slot = G % R
    it = []
    if G >= last: return it
    if G < 9:
        for i in range(4):
            it.append(f's_add_u32 m0, s34, {slot*SLOT + i*1024}')
            it.append(f'buffer_load_dwordx4 v{vD1+i}, s[12:15], s32 offen lds')
        if G == 8: it.append(f's_sub_u32 s32, s32, s38')
        else: it.append(f's_add_u32 s32, s32, {2*294912}')
    else:
        for i in range(5):
            it.append(f's_add_u32 m0, s37, {slot*SLOT + i*1024}')
            it.append(f'buffer_load_dwordx4 v{vD2+i}, s[12:15], s32 offen lds')
        it.append(f's_add_u32 s32, s32, {2*294912}')
    return it
def E_items(G, R):
    if G >= 9: return []
    slot = G % R
    return [f's_add_u32 m0, s36, {slot*SLOT}', f'buffer_load_dwordx4 v{vD1+4}, s[24:27], s35 offen lds', 's_add_u32 s35, s35, 2048']
def B_items(stage):
    it = []
    for j in range(4):
        for sub in range(2):
            it.append(f'buffer_load_dwordx4 {breg(2*stage+sub, j)}, v{vBO+j}, s[20:23], s33 offen offset:{1024*sub}')
    it.append('s_add_u32 s33, s33, 2048')
    return it

def read_items(pas, G, F, b, R, hasE):
    slot = G % R; st = slot // 3; so = (slot % 3) * SLOT
    if pas == 0:
        nt = 10 if hasE else 8
        sub = F // nt; t = F % nt
        if t < 8:
            u = t >> 1; p = t & 1
            base = vS1 + 4 * st + u; o = so + (2 * sub + p) * 4096; o2 = o + 2048
        else:
            base = vE + st; o = so + 16384 + (2 * sub + (t - 8)) * 1024; o2 = o + 512
    else:
        sub = F // 10; t = F % 10; u = t >> 1; p = t & 1
        base = vS2 + st; o = so + (2 * sub + p) * 5120 + u * 32; o2 = o + 2560
    return [f'ds_read_b64_tr_b16 v[{b}:{b+1}], v{base} offset:{o}', f'ds_read_b64_tr_b16 v[{b+2}:{b+3}], v{base} offset:{o2}']

def h_epilogue(a, vm, pas, st='sc1'):
    a('s_lshl_b32 s45, s40, 4\ns_lshl_b32 s46, s3, 2\ns_add_u32 s45, s45, s46')
    a('s_mul_i32 s50, s45, 147456')
    a('s_mul_i32 s46, s41, 18432')
    a('s_add_u32 s50, s50, s46')
    a('s_lshl_b32 s46, s42, 11')
    a('s_add_u32 s51, s50, s46')
    if pas == 1:
        a('s_add_u32 s51, s51, 8192')
        a('s_lshr_b32 s46, s42, 1\ns_add_u32 s46, s46, 16\ns_lshl_b32 s46, s46, 10')
        a('s_add_u32 s52, s50, s46')
        a('s_and_b32 s46, s42, 1\ns_lshl_b32 s46, s46, 3')
        a('s_add_u32 s52, s52, s46')
    a('v_lshlrev_b32 v2, 4, v0')
    T = 40; n = 0
    def hreg(u, j, dst):
        g = ACC + 32 * u + 4 * j; uu = g + 16
        a(f'v_pk_mul_f32 v[{g}:{g+1}], v[{g}:{g+1}], v[{uu}:{uu+1}]')
        a(f'v_pk_mul_f32 v[{g+2}:{g+3}], v[{g+2}:{g+3}], v[{uu+2}:{uu+3}]')
        a(f'v_cvt_pk_bf16_f32 v{dst}, v{g}, v{g+1}')
        a(f'v_cvt_pk_bf16_f32 v{dst+1}, v{g+2}, v{g+3}')
    for j in range(4):
        if j:
            a('s_add_u32 s51, s51, 147456')
            if pas == 1: a('s_add_u32 s52, s52, 147456')
        for i in range(2):
            t = T + 4 * (n % 2); n += 1
            hreg(2 * i, j, t); hreg(2 * i + 1, j, t + 2)
            x = f'buffer_store_dwordx4 v[{t}:{t+3}], v2, s[16:19], s51 offen offset:{1024*i} {st}'
            a(x); vm.add(x, 'ST')
        if pas == 1:
            t = T + 4 * (n % 2); n += 1
            hreg(4, j, t)
            x = f'buffer_store_dwordx2 v[{t}:{t+1}], v2, s[16:19], s52 offen {st}'
            a(x); vm.add(x, 'ST')

def e_epilogue(a, vm, st='sc1'):
    a('v_lshrrev_b32 v3, 4, v0')
    a('v_lshlrev_b32 v3, 15, v3')
    a('v_and_b32 v4, 15, v0')
    a('v_lshl_add_u32 v3, v4, 2, v3')
    a('s_lshl_b32 s45, s43, 17')
    a('s_lshl_b32 s46, s40, 10\ns_add_u32 s45, s45, s46')
    a('s_lshl_b32 s46, s3, 8\ns_add_u32 s45, s45, s46')
    n = 0
    for r in range(4):
        for j in range(4):
            re = ACC + 128 + 4 * j + r; im = re + 16
            t = 40 + (n % 8); n += 1
            a(f'v_cvt_pk_bf16_f32 v{t}, v{re}, v{im}')
            x = f'buffer_store_dword v{t}, v3, s[28:31], s45 offen offset:{64*j} {st}'
            a(x); vm.add(x, 'ST')
        a('s_add_u32 s45, s45, 8192')

def p1_body(a, vm, R, BL, hasE, L, diag=False, prologue=True, tl=None, st='sc1'):
    a('s_lshl_b32 s45, s42, 5')
    a(f's_sub_u32 s38, {8*2*294912 - 512}, s45')
    def issue(items, tag):
        for x in items: a(x); vm.add(x, tag)
    if prologue:
        for t in range(max(R - 1, BL)):
            if t < R - 1: issue(D_items(t, R, hasE), f'D{t}')
            if hasE and t < R - 1: issue(E_items(t, R), f'D{t}')
            if t < BL: issue(B_items(t), f'B{t}')
        a(f's_waitcnt vmcnt({min(63, vm.wait_for(["D0", "B0"]))})')
        a('s_barrier')
    if diag: stamp(a, 1)
    ps = Pass(a, vm)
    for pas in range(2):
        nt = (10 if hasE else 8) if pas == 0 else 10
        stages = [[(2 * s + F // nt, F % nt) for F in range(2 * nt)] for s in range(9)]
        G0 = 9 * pas
        def sneed(si, pas=pas, G0=G0):
            G = G0 + si
            return [f'D{G+1}']
        def sgroups(si, pas=pas, G0=G0):
            G = G0 + si; out = []
            Gn = G + R - 1
            out.append((f'D{Gn}', D_items(Gn, R, hasE) + (E_items(Gn, R) if hasE else [])))
            if pas == 0 and si + BL <= 8: out.append((f'B{si+BL}', B_items(si + BL)))
            return out
        ps.emit(stages, lambda si, F, b, pas=pas, G0=G0: read_items(pas, G0 + si, F, b, R, hasE), sneed, sgroups, tl=tl, pre_need=(lambda si: [f'B{si}']) if pas == 0 else None)
        a('s_nop 7')
        if pas == 0 and hasE: e_epilogue(a, vm, st)
        h_epilogue(a, vm, pas, st)

def gen_p1_kernel(R=6, BL=4, diag=False, name='P1', allE=False, tline=False, st='sc1'):
    a = Asm(); L = name; vm = VM()
    a('s_cmp_ge_u32 s2, 256')
    a(f's_cbranch_scc1 {L}_end')
    if diag: stamp(a, 0)
    a(f's_load_dwordx4 s[4:7], s[0:1], {A_WG}')
    a(f's_load_dwordx2 s[8:9], s[0:1], {A_WS}')
    a('v_lshrrev_b32 v1, 6, v0')
    a('v_and_b32 v0, 63, v0')
    a('v_readfirstlane_b32 s3, v1')
    wgmap(a, 's2', 's40', 's41', 's42')
    a('s_lshl_b32 s43, s41, 2\ns_add_u32 s43, s43, s42')
    a('s_waitcnt lgkmcnt(0)')
    p1_setup(a, R)
    srd(a, 16, 8, 9, HH_SZ, HH)
    srd(a, 28, 8, 9, XD_SZ, XD)
    a('s_cmp_ge_u32 s43, 18')
    a(f's_cbranch_scc1 {L}_noE')
    vmE = VM(); p1_body(a, vmE, R, BL, True, L, diag and not tline, tl=[0] if tline else None, st=st)
    a(f's_branch {L}_done')
    a.label(f'{L}_noE')
    vmN = VM(); p1_body(a, vmN, R, BL, allE, L, diag and not tline, tl=[0] if tline else None, st=st)
    a.label(f'{L}_done')
    if tline:
        a('s_waitcnt lgkmcnt(0)')
        a('v_writelane_b32 v9, s60, 17')
        a('s_memtime s[60:61]\ns_waitcnt lgkmcnt(0)\nv_writelane_b32 v9, s60, 18')
        a('s_waitcnt vmcnt(0)')
        a('s_memtime s[60:61]\ns_waitcnt lgkmcnt(0)\nv_writelane_b32 v9, s60, 19')
        a(f's_load_dwordx2 s[4:5], s[0:1], {A_WS}')
        a('s_waitcnt lgkmcnt(0)')
        srd(a, 24, 4, 5, 0x10000000, 0)
        a('s_lshl_b32 s46, s2, 3\ns_add_u32 s46, s46, s3\ns_lshl_b32 s46, s46, 8\ns_add_u32 s46, s46, 0x8000000')
        a('v_lshlrev_b32 v2, 2, v0')
        a('buffer_store_dword v9, v2, s[24:27], s46 offen')
    elif diag:
        stamp(a, 2)
        a('s_waitcnt vmcnt(0)')
        stamp(a, 3)
        a(f's_load_dwordx2 s[4:5], s[0:1], {A_WS}')
        a('s_waitcnt lgkmcnt(0)')
        srd(a, 24, 4, 5, 0x10000000, 0)
        a('s_lshl_b32 s46, s2, 3\ns_add_u32 s46, s46, s3\ns_lshl_b32 s46, s46, 6\ns_add_u32 s46, s46, 0x8000000')
        for i in range(16): a(f'v_mov_b32 v{60+i}, s{60+i}')
        a('v_mov_b32 v2, 0')
        a('s_mov_b64 exec, 1')
        for i in range(4): a(f'buffer_store_dwordx4 v[{60+4*i}:{63+4*i}], v2, s[24:27], s46 offen offset:{16*i}')
    a.label(f'{L}_end')
    a('s_endpgm')
    return a.lines
```

```python
from asmlib import *
from common import *
from gemm_core import VM

P_ = 96
RE = 128
TW = 192
TWB = 224
Q_ = 16
def c64(s, t, ks): r = 96 + 64 * s + 32 * t + 4 * ks; return f'a[{r}:{r+3}]'
def c32(s, i): r = 224 + 16 * s + 4 * i; return f'a[{r}:{r+3}]'
def re_(t): return RE + 32 * t
def im_(t): return RE + 32 * t + 16
def rng(r, n): return f'v[{r}:{r+n-1}]'

def interleave(a, mf, other, skip=2, per=4):
    other = list(other); n = len(mf)
    for i, m in enumerate(mf):
        a(m)
        if i >= skip:
            rem = n - i
            k = -(-len(other) // rem) if rem else len(other)
            k = min(k, per) if i < n - 1 else len(other)
            for _ in range(min(k, len(other))): a(other.pop(0))
    for x in other: a(x)

def cmul_pack(t, tw, dst, conj_out=False, wmul=False):
    it = []
    for rp in range(8):
        r = re_(t) + 2 * rp; m = im_(t) + 2 * rp
        c = tw + 4 * rp; s = c + 2
        t1 = 48 + 4 * (rp & 1); t2 = t1 + 2
        if not wmul:
            it.append(f'v_pk_mul_f32 {rng(t1,2)}, {rng(r,2)}, {rng(c,2)}')
            it.append(f'v_pk_mul_f32 {rng(t2,2)}, {rng(m,2)}, {rng(c,2)}')
            it.append(f'v_pk_fma_f32 {rng(t1,2)}, {rng(m,2)}, {rng(s,2)}, {rng(t1,2)}')
            it.append(f'v_pk_fma_f32 {rng(t2,2)}, {rng(r,2)}, {rng(s,2)}, {rng(t2,2)} neg_lo:[1,0,0] neg_hi:[1,0,0]')
            it.append(f'v_cvt_pk_bf16_f32 v{dst+2*rp}, v{t1}, v{t2}')
            it.append(f'v_cvt_pk_bf16_f32 v{dst+2*rp+1}, v{t1+1}, v{t2+1}')
        else:
            it.append(f'v_pk_mul_f32 {rng(t1,2)}, {rng(r,2)}, {rng(c,2)}')
            it.append(f'v_pk_mul_f32 {rng(t2,2)}, {rng(r,2)}, {rng(s,2)}')
            it.append(f'v_pk_fma_f32 {rng(t1,2)}, {rng(m,2)}, {rng(s,2)}, {rng(t1,2)} neg_lo:[1,0,0] neg_hi:[1,0,0]')
            it.append(f'v_pk_fma_f32 {rng(t2,2)}, {rng(m,2)}, {rng(c,2)}, {rng(t2,2)}')
            it.append(f'v_cvt_pk_bf16_f32 v{dst+2*rp}, v{t1}, -v{t2}')
            it.append(f'v_cvt_pk_bf16_f32 v{dst+2*rp+1}, v{t1+1}, -v{t2+1}')
    return it

def mf(d, A, B, first):
    c = '0' if first else rng(d, 16)
    return f'v_mfma_f32_32x32x16_bf16 {rng(d,16)}, {A}, {B}, {c}'

def fft_column(a, L, sk='s44', ld='sc1', st='sc1'):
    srd(a, 12, 8, 9, XD_SZ, XD)
    srd(a, 16, 8, 9, TT_SZ, TT)
    srd(a, 20, 8, 9, WTF_SZ, WTF)
    srd(a, 24, 8, 9, 0x14000, FC64)
    a(f's_cmp_eq_u32 {sk}, 288')
    a(f's_cselect_b32 s45, 0, {sk}')
    a('s_lshl_b32 s45, s45, 13')
    a('s_add_u32 s46, s45, 4096')
    a(f's_lshl_b32 s47, {sk}, 14')
    a('v_and_b32 v1, 31, v0\nv_lshrrev_b32 v2, 5, v0')
    a('v_lshlrev_b32 v1, 2, v1\nv_lshl_add_u32 v1, v2, 9, v1')
    a('v_lshlrev_b32 v3, 4, v0')
    vm = VM()
    for ks in range(8):
        for r in range(4):
            o = (8 * (ks & 3) + r) * 128
            vm.issue(a, f'buffer_load_dword v{P_+4*ks+r}, v1, s[12:15], {"s45" if ks < 4 else "s46"} offen offset:{o} {ld}', 'X')
    def cload(dst, off, tag):
        so = off & ~0xfff; io = off & 0xfff
        a(f's_mov_b32 s48, {so}')
        vm.issue(a, f'buffer_load_dwordx4 {dst}, v3, s[24:27], s48 offen offset:{io}', tag)
    for t in range(2):
        for s in range(2):
            for ks in range(8): cload(c64(s, t, ks), s * 16384 + t * 8192 + ks * 1024, f'C64{t}')
    def tload(dst, off, srd_, sbase=None):
        it = []
        for rp in range(8):
            o = off + rp * 1024
            if sbase: it.append(f's_add_u32 s48, {sbase}, {o & ~0xfff}')
            else: it.append(f's_mov_b32 s48, {o & ~0xfff}')
            it.append(f'buffer_load_dwordx4 {rng(dst+4*rp,4)}, v3, {srd_}, s48 offen offset:{o & 0xfff}' + (f' {ld}' if sbase else ''))
        return it
    def iss(items, tag):
        for x in items: vm.issue(a, x, tag)
    iss(tload(TW, TW1 - FC64, 's[24:27]'), 'TW1a')
    iss(tload(TWB, TW1 - FC64 + 8192, 's[24:27]'), 'TW1b')
    for s in range(2):
        for i in range(4): cload(c32(s, i), FC32 - FC64 + s * 4096 + i * 1024, 'C32')
    vm.wait(a, ['X', 'C640'])
    a(f's_cmp_eq_u32 {sk}, 0')
    a(f's_cbranch_scc0 {L}_n0')
    for r in range(32): a(f'v_and_b32 v{P_+r}, 0xffff, v{P_+r}')
    a.label(f'{L}_n0')
    a(f's_cmp_eq_u32 {sk}, 288')
    a(f's_cbranch_scc0 {L}_n1')
    for r in range(32): a(f'v_lshrrev_b32 v{P_+r}, 16, v{P_+r}')
    a.label(f'{L}_n1')
    def S1(t): return [mf(re_(t) if s == 0 else im_(t), rng(P_+4*ks, 4), c64(s, t, ks), ks == 0) for ks in range(8) for s in range(2)]
    for x in S1(0): a(x)
    vm.wait(a, ['C641', 'TW1a'])
    interleave(a, S1(1), cmul_pack(0, TW, Q_), skip=3)
    wl0 = tload(TW, 0, 's[20:23]', 's47')
    def S2(t, src): return [mf(re_(t) if s == 0 else im_(t), c32(s, i), rng(src+4*i, 4), i == 0) for i in range(4) for s in range(2)]
    vm.wait(a, ['C32', 'TW1b'])
    iss(wl0, 'W0')
    interleave(a, S2(0, Q_), cmul_pack(1, TWB, Q_ + 16), skip=0, per=7)
    wl1 = tload(TWB, 8192, 's[20:23]', 's47')
    iss(wl1, 'W1')
    vm.wait(a, ['W0'])
    interleave(a, S2(1, Q_ + 16), cmul_pack(0, TW, P_, wmul=True), skip=2, per=8)
    tw2a = tload(TW, TW2 - FC64, 's[24:27]')
    iss(tw2a, 'T2a')
    def I2(t, src): return [mf(re_(t) if s == 0 else im_(t), rng(src+4*i, 4), c32(s, i), i == 0) for i in range(4) for s in range(2)]
    vm.wait(a, ['W1'])
    interleave(a, I2(0, P_), cmul_pack(1, TWB, P_ + 16, wmul=True), skip=0, per=7)
    tw2b = tload(TWB, TW2 - FC64 + 8192, 's[24:27]')
    iss(tw2b, 'T2b')
    vm.wait(a, ['T2a'])
    interleave(a, I2(1, P_ + 16), cmul_pack(0, TW, Q_), skip=2, per=8)
    O = 56
    def oreg(tp, s): return (O + 16 * s) if tp == 0 else (re_(0) + 16 * s)
    def I1(tp, kss): return [mf(oreg(tp, s), c64(s, tp, ks), rng(Q_+4*ks, 4), ks == 0) for ks in kss for s in range(2)]
    vm.wait(a, ['T2b'])
    interleave(a, I1(0, range(4)) + I1(1, range(4)), cmul_pack(1, TWB, Q_ + 16), skip=0, per=4)
    def fin(tp):
        it = []
        for i in range(16):
            ip, r = i >> 2, i & 3
            d = P_ + 16 * tp + i
            it.append(f'v_cvt_pk_bf16_f32 v{d}, v{oreg(tp,0)+i}, -v{oreg(tp,1)+i}')
        return it
    for x in I1(0, range(4, 8)): a(x)
    interleave(a, I1(1, range(4, 8)), fin(0), skip=3)
    for x in fin(1): a(x)
    def stores(op, half):
        for tp in range(2):
            for i in range(16):
                ip, r = i >> 2, i & 3
                a(f'{op} v{P_+16*tp+i}, v1, s[16:19], {"s45" if tp == 0 else "s46"} offen offset:{(8*ip+r)*128 + half} {st}')
    a(f's_cmp_eq_u32 {sk}, 0')
    a(f's_cbranch_scc1 {L}_s0')
    a(f's_cmp_eq_u32 {sk}, 288')
    a(f's_cbranch_scc1 {L}_s1')
    stores('buffer_store_dword', 0)
    a(f's_branch {L}_sd')
    a.label(f'{L}_s0')
    stores('buffer_store_short', 0)
    a(f's_branch {L}_sd')
    a.label(f'{L}_s1')
    stores('buffer_store_short', 2)
    a.label(f'{L}_sd')

def gen_p2_kernel(name='P2'):
    a = Asm(); L = name
    a('s_cmp_ge_u32 s2, 289')
    a(f's_cbranch_scc1 {L}_end')
    a(f's_load_dwordx2 s[8:9], s[0:1], {A_WS}')
    a('s_mov_b32 s44, s2')
    a('s_waitcnt lgkmcnt(0)')
    fft_column(a, L)
    a.label(f'{L}_end')
    a('s_endpgm')
    return a.lines
```

```python
from asmlib import *
from common import *
from gemm_core import *
from k1 import wgmap, stamp

SLOT = 20480
vA5 = 10
vA5g = 15
vB4 = 20
vHO = 28
vR5 = 32
vR4 = 34
PK = 176

def p3_setup(a):
    srd(a, 12, 4, 5, WD_SZ)
    a('s_mov_b32 s24, s4\ns_mov_b32 s25, s5')
    a('s_cmp_lt_u32 s3, 2')
    csel(a, 's26', hex(WD_SZ), 0)
    a(f's_mov_b32 s27, {hex(SRD3)}')
    srd(a, 20, 8, 9, HH_SZ, HH)
    srd(a, 16, 8, 9, PP_SZ, PP)
    a('s_mul_i32 s44, s41, 576')
    a('s_lshl_b32 s45, s3, 5')
    a('s_add_u32 s52, s44, s45')
    a('s_add_u32 s53, s52, 128')
    a('s_lshr_b32 s46, s3, 1\ns_mul_i32 s46, s46, 80')
    a('s_and_b32 s47, s3, 1\ns_lshl_b32 s47, s47, 5')
    a('s_add_u32 s54, s44, s46\ns_add_u32 s54, s54, s47\ns_add_u32 s54, s54, 256')
    a('s_add_u32 s55, s54, 160')
    a('s_mul_i32 s46, s3, 160')
    a('s_add_u32 s56, s44, s46\ns_add_u32 s56, s56, 320')
    for r in range(52, 57): a(f's_mul_i32 s{r}, s{r}, 1152')
    a('s_mul_i32 s57, s42, 160\ns_add_u32 s57, s57, 512')
    a('s_lshl_b32 s58, s42, 7')
    for i in range(5):
        a(f'v_add_u32 v2, {64*i}, v0')
        a('v_mul_u32_u24 v3, 6554, v2\nv_lshrrev_b32 v3, 16, v3')
        a('v_mul_u32_u24 v4, 10, v3\nv_sub_u32 v4, v2, v4')
        a('v_mul_u32_u24 v5, 1152, v3')
        a(f'v_lshl_add_u32 v{vA5+i}, v4, 4, v5')
        a('v_cmp_le_u32 vcc, 16, v3')
        a(f'v_mov_b32 v6, {64*1152}')
        a('v_cndmask_b32 v6, 0, v6, vcc')
        a(f'v_add_u32 v{vA5g+i}, v{vA5+i}, v6')
    a('v_lshrrev_b32 v2, 3, v0')
    a('v_bfe_u32 v3, v0, 1, 2')
    a('v_bfe_u32 v4, v0, 4, 2')
    a('v_xor_b32 v3, v3, v4')
    a('v_and_b32 v4, 1, v0')
    a('v_lshlrev_b32 v3, 5, v3')
    a('v_lshl_add_u32 v3, v4, 4, v3')
    a('v_mul_u32_u24 v2, 1152, v2')
    a(f'v_add_u32 v{vB4}, v2, v3')
    for i in range(1, 4): a(f'v_add_u32 v{vB4+i}, {8*1152}, v{vB4+i-1}')
    for i in range(4):
        if i < 2: a(f'v_mov_b32 v{vB4+4+i}, v{vB4+i}')
        else: a(f'v_add_u32 v{vB4+4+i}, {64*1152}, v{vB4+i}')
    a('v_lshlrev_b32 v6, 4, v0')
    a('s_mul_i32 s45, s3, 589824')
    a(f'v_add_u32 v{vHO}, s45, v6')
    for j in range(1, 4): a(f'v_add_u32 v{vHO+j}, 147456, v{vHO+j-1}')
    a('s_mul_i32 s33, s40, 2359296')
    a('s_mul_i32 s45, s41, 18432')
    a('s_add_u32 s33, s33, s45')
    a('v_lshrrev_b32 v2, 4, v0')
    a('v_bfe_u32 v3, v0, 2, 2')
    a('v_lshl_add_u32 v2, v2, 2, v3')
    a('v_and_b32 v3, 3, v0')
    a('v_lshlrev_b32 v3, 3, v3')
    a(f'v_mul_u32_u24 v{vR5}, 160, v2')
    a(f'v_add_u32 v{vR5}, v{vR5}, v3')
    a(f'v_add_u32 v{vR5+1}, {3*SLOT}, v{vR5}')
    a('v_bfe_u32 v4, v2, 1, 2')
    a('v_lshlrev_b32 v5, 7, v2')
    a('v_add_u32 v5, v5, v3')
    for u in range(4):
        a(f'v_xor_b32 v7, {u}, v4')
        a(f'v_lshl_add_u32 v{vR4+u}, v7, 5, v5')
        a(f'v_add_u32 v{vR4+4+u}, {3*SLOT}, v{vR4+u}')
    a('s_mul_i32 s34, s3, 5120')
    a('s_lshl_b32 s35, s3, 12')

def D3(G, R, slot0=0):
    if G >= 10: return []
    slot = (G + slot0) % R; s = G % 5; it = []
    srd_ = 's[12:15]' if s < 4 else 's[24:27]'
    if G < 5:
        it.append(f's_add_u32 s32, s{52+s}, s57')
        for i in range(5):
            it.append(f's_add_u32 m0, s34, {slot*SLOT + i*1024}')
            it.append(f'buffer_load_dwordx4 v{(vA5 if s < 4 else vA5g)+i}, {srd_}, s32 offen lds')
    else:
        it.append(f's_add_u32 s32, s{52+s}, s58')
        for i in range(4):
            it.append(f's_add_u32 m0, s35, {slot*SLOT + i*1024}')
            it.append(f'buffer_load_dwordx4 v{(vB4 if s < 4 else vB4+4)+i}, {srd_}, s32 offen lds')
    return it
def H_items(stage, ld='sc1'):
    it = []
    for kap in range(4 * stage, min(4 * stage + 4, 18)):
        for j in range(4):
            o = 1024 * (kap % 4)
            it.append(f'buffer_load_dwordx4 {breg(kap, j)}, v{vHO+j}, s[20:23], s33 offen offset:{o} {ld}')
    it.append('s_add_u32 s33, s33, 4096')
    return it
def read3(G, F, b, R, slot0=0):
    slot = (G + slot0) % R; st = slot // 3; so = (slot % 3) * SLOT
    if G < 5:
        sub = F // 5; t = F % 5
        base = vR5 + st; o = so + sub * 5120 + t * 32; o2 = o + 2560
    else:
        sub = F // 4; t = F % 4
        base = vR4 + 4 * st + t; o = so + sub * 4096; o2 = o + 2048
    return [f'ds_read_b64_tr_b16 v[{b}:{b+1}], v{base} offset:{o}', f'ds_read_b64_tr_b16 v[{b+2}:{b+3}], v{base} offset:{o2}']

def pp_base(a):
    a('s_lshl_b32 s45, s40, 2\ns_add_u32 s45, s45, s42')
    a('s_lshl_b32 s45, s45, 3')
    a('s_lshl_b32 s46, s3, 1\ns_add_u32 s45, s45, s46')
    a('s_lshl_b32 s45, s45, 3\ns_add_u32 s45, s45, s41')
    a('s_mul_i32 s50, s45, 9216')
def pack_items(pas, dst):
    nt = 5 if pas == 0 else 4; it = []
    for j in range(4):
        for t in range(nt):
            d = ACC + 16 * t + 4 * j
            it.append(f'v_cvt_pk_bf16_f32 v{dst + j*2*nt + 2*t}, v{d}, v{d+1}')
            it.append(f'v_cvt_pk_bf16_f32 v{dst + j*2*nt + 2*t + 1}, v{d+2}, v{d+3}')
    return it
def store_items(pas, src, st='sc1'):
    nt = 5 if pas == 0 else 4; it = []
    for j in range(4):
        off = (j >> 1) * 8 * 9216 + (j & 1) * 4608
        it.append(f's_add_u32 s51, s50, {off + (0 if pas == 0 else 2560)}')
        r = src + j * 2 * nt
        it.append(f'buffer_store_dwordx4 v[{r}:{r+3}], v1, s[16:19], s51 offen {st}')
        it.append(f'buffer_store_dwordx4 v[{r+4}:{r+7}], v1, s[16:19], s51 offen offset:1024 {st}')
        if pas == 0: it.append(f'buffer_store_dwordx2 v[{r+8}:{r+9}], v2, s[16:19], s51 offen offset:2048 {st}')
    return it

def p3_body(a, vm, R, HL, diag=False, prologue=True, tl=None, slot0=0):
    def issue(items, tag):
        for x in items: a(x); vm.add(x, tag)
    if prologue:
        for t in range(max(R - 1, HL)):
            if t < R - 1: issue(D3(t, R, slot0), f'D{t}')
            if t < HL: issue(H_items(t), f'H{t}')
        a(f's_waitcnt vmcnt({min(63, vm.wait_for(["D0", "H0"]))})')
        a('s_barrier')
    if diag: stamp(a, 1)
    pp_base(a)
    a('v_lshlrev_b32 v1, 4, v0\nv_lshlrev_b32 v2, 3, v0')
    ps = Pass(a, vm)
    for pas in range(2):
        nt = 5 if pas == 0 else 4
        stages = [[(kap, t) for kap in range(4 * s, min(4 * s + 4, 18)) for t in range(nt)] for s in range(5)]
        G0 = 5 * pas
        def sneed(si, pas=pas, G0=G0):
            return [f'D{G0+si+1}']
        def sgroups(si, pas=pas, G0=G0):
            G = G0 + si; out = [(f'D{G+R-1}', D3(G + R - 1, R, slot0))]
            if pas == 0 and si + HL <= 4: out.append((f'H{si+HL}', H_items(si + HL)))
            if pas == 1 and si < 4:
                sts = store_items(0, PK)
                per = [sts[4*si:4*si+4]]
                out.append(('ST', sts[4*si:4*si+4]))
            return out
        ps.emit(stages, lambda si, F, b, G0=G0: read3(G0 + si, F, b, R, slot0), sneed, sgroups, tl=tl, pre_need=(lambda si: [f'H{si}']) if pas == 0 else None)
        a('s_nop 7')
        if pas == 0:
            for x in pack_items(0, PK): a(x)
        else:
            for x in pack_items(1, PK + 40): a(x)
            for x in store_items(1, PK + 40): a(x); vm.add(x, 'ST')

def gen_p3_kernel(R=6, HL=2, diag=False, name='P3', tline=False):
    a = Asm(); L = name; vm = VM()
    a('s_cmp_ge_u32 s2, 256')
    a(f's_cbranch_scc1 {L}_end')
    if diag: stamp(a, 0)
    a(f's_load_dwordx2 s[4:5], s[0:1], {A_WD}')
    a(f's_load_dwordx2 s[8:9], s[0:1], {A_WS}')
    a('v_lshrrev_b32 v1, 6, v0')
    a('v_and_b32 v0, 63, v0')
    a('v_readfirstlane_b32 s3, v1')
    wgmap(a, 's2', 's40', 's41', 's42')
    a('s_waitcnt lgkmcnt(0)')
    p3_setup(a)
    p3_body(a, vm, R, HL, diag and not tline, tl=[0] if tline else None)
    if tline:
        a('s_waitcnt lgkmcnt(0)')
        a('v_writelane_b32 v9, s60, 9')
        a('s_memtime s[60:61]\ns_waitcnt lgkmcnt(0)\nv_writelane_b32 v9, s60, 10')
        a('s_waitcnt vmcnt(0)')
        a('s_memtime s[60:61]\ns_waitcnt lgkmcnt(0)\nv_writelane_b32 v9, s60, 11')
        a(f's_load_dwordx2 s[4:5], s[0:1], {A_WS}')
        a('s_waitcnt lgkmcnt(0)')
        srd(a, 24, 4, 5, 0x10000000, 0)
        a('s_lshl_b32 s46, s2, 3\ns_add_u32 s46, s46, s3\ns_lshl_b32 s46, s46, 8\ns_add_u32 s46, s46, 0x8000000')
        a('v_lshlrev_b32 v2, 2, v0')
        a('buffer_store_dword v9, v2, s[24:27], s46 offen')
    a.label(f'{L}_end')
    a('s_endpgm')
    return a.lines
```

```python
from asmlib import *
from common import *
from gemm_core import VM
from k1 import wgmap, stamp

TACC = 96
LDS_T = 0
def dcol(t): return None

def p4_setup(a):
    srd(a, 12, 8, 9, TT_SZ, TT)
    srd(a, 16, 8, 9, EIF_SZ, EIF)
    srd(a, 20, 8, 9, PP_SZ, PP)
    srd(a, 24, 4, 5, X_SZ)
    srd(a, 28, 6, 7, X_SZ)
    a('s_lshl_b32 s44, s40, 8\ns_lshl_b32 s45, s41, 5\ns_add_u32 s44, s44, s45')
    a('v_lshlrev_b32 v1, 4, v0')
    a('v_lshlrev_b32 v2, 3, v0')
    a('v_lshrrev_b32 v3, 4, v0\nv_and_b32 v4, 15, v0')
    a('v_lshlrev_b32 v5, 15, v3\nv_lshl_add_u32 v5, v4, 2, v5')
    a('v_mul_u32_u24 v6, 1152, v4\nv_lshl_add_u32 v6, v3, 3, v6')

def tgemm_loads(a, vm, ld='sc1'):
    a('s_mul_i32 s45, s3, 5\ns_cmp_eq_u32 s3, 3\ns_cselect_b32 s46, 1, 0\ns_sub_u32 s45, s45, s46')
    a('s_mul_i32 s46, s42, 18\ns_add_u32 s46, s46, s45\ns_mul_i32 s46, s46, 9216')
    a('s_lshl_b32 s47, s45, 17')
    a('s_lshl_b32 s48, s44, 2\ns_add_u32 s47, s47, s48')
    for i in range(5):
        base = 44 * i
        if i == 4:
            a('s_cmp_ge_u32 s3, 2')
            a(f's_cselect_b32 s47, {hex(TT_SZ)}, s47')
            a('s_cselect_b32 s46, 0, s46')
        for c in range(4):
            a(f's_add_u32 s48, s47, {c*8192}')
            for jj in range(2):
                vm.issue(a, f'buffer_load_dword a{base+36+4*jj+c}, v5, s[12:15], s48 offen offset:{64*jj} {ld}', f'T{i}')
        for t in range(9):
            o = t * 1024
            if o >= 4096 and o % 4096 == 0: pass
            a(f's_add_u32 s48, s46, {o & ~0xfff}') if (t % 4 == 0) else None
            vm.issue(a, f'buffer_load_dwordx4 a[{base+4*t}:{base+4*t+3}], v1, s[16:19], s48 offen offset:{o & 0xfff}', f'T{i}')
        a(f's_add_u32 s46, s46, 9216\ns_add_u32 s47, s47, {16*8192}')

def tgemm_compute(a, vm):
    for i in range(5):
        vm.wait(a, [f'T{i}'])
        base = 44 * i
        for t in range(9):
            for jj in range(2):
                d = TACC + 8 * t + 4 * jj
                c = '0' if i == 0 else f'v[{d}:{d+3}]'
                a(f'v_mfma_f32_16x16x32_bf16 v[{d}:{d+3}], a[{base+4*t}:{base+4*t+3}], a[{base+36+4*jj}:{base+36+4*jj+3}], {c}')
    a('s_mul_i32 s45, s3, 18432')
    a(f'v_add_u32 v7, s45, v1')
    if LDS_T: a(f'v_add_u32 v7, {LDS_T}, v7')
    a('s_nop 4')
    for t in range(9):
        for jj in range(2):
            d = TACC + 8 * t + 4 * jj
            a(f'ds_write_b128 v7, v[{d}:{d+3}] offset:{(2*t+jj)*1024}')

CHUNKS = {0: [(0, 0), (0, 1), (0, 2)], 1: [(0, 3), (0, 4), (1, 2)], 2: [(1, 0), (1, 1)], 3: [(1, 3), (1, 4)]}
CH_TILES = {0: (0, 1), 1: (2, 3), 2: (4,), 3: (5, 6), 4: (7, 8)}
CH_OFF = {0: 0, 1: 1024, 2: 2048, 3: 2560, 4: 3584}

def col_expr(a, t, dst):
    if t < 5: a(f's_mul_i32 {dst}, s42, 160\ns_add_u32 {dst}, {dst}, {512 + 32*t}')
    else: a(f's_lshl_b32 {dst}, s42, 7\ns_add_u32 {dst}, {dst}, {32*(t-5)}')

def final_loads(a, vm, w, ld='sc1'):
    a('s_lshl_b32 s45, s40, 2\ns_add_u32 s45, s45, s42\ns_lshl_b32 s45, s45, 3\ns_add_u32 s45, s45, s41')
    a('s_mul_i32 s50, s45, 73728')
    a('s_mul_i32 s51, s44, 1152')
    PB = 96 + 72
    regs = []
    for n, (jj, ci) in enumerate(CHUNKS[w]):
        tiles = CH_TILES[ci]; base = [16, 168, 208][n] if False else None
    return regs

def final_part(a, vm, w, L, ld='sc1'):
    a('s_lshl_b32 s45, s40, 2\ns_add_u32 s45, s45, s42\ns_lshl_b32 s45, s45, 3\ns_add_u32 s45, s45, s41')
    a('s_mul_i32 s50, s45, 73728')
    a('s_mul_i32 s51, s44, 1152')
    chunks = CHUNKS[w]
    PB = [96, 128, 160]
    XB = [192, 196, 200]
    for n, (jj, ci) in enumerate(chunks):
        tiles = CH_TILES[ci]; wide = len(tiles) == 2
        for p in range(8):
            o = p * 9216 + jj * 4608 + CH_OFF[ci]
            a(f's_add_u32 s46, s50, {o}')
            if wide: vm.issue(a, f'buffer_load_dwordx4 v[{PB[n]+4*p}:{PB[n]+4*p+3}], v1, s[20:23], s46 offen {ld}', f'P{n}')
            else: vm.issue(a, f'buffer_load_dwordx2 v[{PB[n]+4*p}:{PB[n]+4*p+1}], v2, s[20:23], s46 offen {ld}', f'P{n}')
        for k, t in enumerate(tiles):
            col_expr(a, t, 's46')
            a(f's_add_u32 s46, s46, s51')
            if jj: a(f's_add_u32 s46, s46, {16*1152}')
            vm.issue(a, f'buffer_load_dwordx2 v[{XB[n]+2*k}:{XB[n]+2*k+1}], v6, s[24:27], s46 offen', f'P{n}')
    a('s_mov_b32 s56, 0x00003f80\ns_mov_b32 s57, 0x3f800000\ns_mov_b32 s58, 0xffff0000')
    if LDS_T: a(f'v_add_u32 v7, {LDS_T}, v1')
    else: a('v_mov_b32 v7, v1')
    a('v_add_u32 v8, 36864, v7')
    for n, (jj, ci) in enumerate(chunks):
        tiles = CH_TILES[ci]
        A = 16
        for k, t in enumerate(tiles):
            for ww in range(4):
                o = (ww & 1) * 18432 + (2 * t + jj) * 1024
                a(f'ds_read_b128 v[{24+16*k+4*ww}:{24+16*k+4*ww+3}], v{7 + (ww >> 1)} offset:{o}')
        a('s_waitcnt lgkmcnt(0)')
        for k, t in enumerate(tiles):
            b = 24 + 16 * k; d = A + 4 * k
            for h in range(2):
                a(f'v_pk_add_f32 v[{d+2*h}:{d+2*h+1}], v[{b+2*h}:{b+2*h+1}], v[{b+4+2*h}:{b+4+2*h+1}]')
                a(f'v_pk_add_f32 v[{b+8+2*h}:{b+8+2*h+1}], v[{b+8+2*h}:{b+8+2*h+1}], v[{b+12+2*h}:{b+12+2*h+1}]')
            for h in range(2):
                a(f'v_pk_add_f32 v[{d+2*h}:{d+2*h+1}], v[{d+2*h}:{d+2*h+1}], v[{b+8+2*h}:{b+8+2*h+1}]')
        vm.wait(a, [f'P{n}'])
        for k, t in enumerate(tiles):
            d = A + 4 * k
            for h in range(2):
                x = XB[n] + 2 * k + h
                a(f'v_dot2_f32_bf16 v{d+2*h}, v{x}, s56, v{d+2*h}')
                a(f'v_dot2_f32_bf16 v{d+2*h+1}, v{x}, s57, v{d+2*h+1}')
        for p in range(8):
            for k, t in enumerate(tiles):
                d = A + 4 * k
                for h in range(2):
                    r = PB[n] + 4 * p + 2 * k + h
                    a(f'v_dot2_f32_bf16 v{d+2*h}, v{r}, s56, v{d+2*h}')
                    a(f'v_dot2_f32_bf16 v{d+2*h+1}, v{r}, s57, v{d+2*h+1}')
        a('s_nop 2')
        for k, t in enumerate(tiles):
            d = A + 4 * k; o = 56 + 2 * k
            a(f'v_cvt_pk_bf16_f32 v{o}, v{d}, v{d+1}')
            a(f'v_cvt_pk_bf16_f32 v{o+1}, v{d+2}, v{d+3}')
            col_expr(a, t, 's46')
            a(f's_add_u32 s46, s46, s51')
            if jj: a(f's_add_u32 s46, s46, {16*1152}')
            vm.issue(a, f'buffer_store_dwordx2 v[{o}:{o+1}], v6, s[28:31], s46 offen', 'O')

def gen_p4_kernel(name='P4'):
    a = Asm(); L = name; vm = VM()
    a('s_cmp_ge_u32 s2, 256')
    a(f's_cbranch_scc1 {L}_end')
    a(f's_load_dwordx2 s[4:5], s[0:1], {A_X}')
    a(f's_load_dwordx2 s[6:7], s[0:1], {A_OUT}')
    a(f's_load_dwordx2 s[8:9], s[0:1], {A_WS}')
    a('v_lshrrev_b32 v1, 6, v0')
    a('v_and_b32 v0, 63, v0')
    a('v_readfirstlane_b32 s3, v1')
    wgmap(a, 's2', 's40', 's41', 's42')
    a('s_waitcnt lgkmcnt(0)')
    p4_setup(a)
    tgemm_loads(a, vm)
    tgemm_compute(a, vm)
    a('s_waitcnt lgkmcnt(0)')
    a('s_barrier')
    for w in range(4):
        if w < 3:
            a(f's_cmp_lg_u32 s3, {w}')
            a(f's_cbranch_scc1 {L}_w{w+1}')
        vmw = VM()
        final_part(a, vmw, w, L)
        a('s_endpgm')
        if w < 3: a.label(f'{L}_w{w+1}')
    a.label(f'{L}_end')
    a('s_endpgm')
    return a.lines
```

```python
import sys
sys.path.insert(0, 'dev')
from asmlib import *
from common import *
import gen
from k0 import gen_k0
import p1, p2, p3, p4
out = sys.argv[1]
ks = [('prep_kernel', gen_k0(), 256, 512, 0, 128, 64),
      ('gemm1_kernel', p1.gen_p1_kernel(R=5, BL=3, st=''), 256, 256, 5*p1.SLOT, 512, 96),
      ('fft_kernel', p2.gen_p2_kernel(), 289, 64, 0, 512, 96),
      ('gemm2_kernel', p3.gen_p3_kernel(R=5, HL=2), 256, 256, 5*p3.SLOT, 512, 96),
      ('tail_kernel', p4.gen_p4_kernel(), 256, 256, 73728, 512, 96)]
gen.build(ks, out)
```
